```python
import torch

def _softmax(x, axis=-1):
    return torch.softmax(x, dim=axis)

def _gelu(x):
    return torch.nn.functional.gelu(x, approximate='tanh')

def _silu(x):
    return torch.nn.functional.silu(x)

def _sigmoid(x):
    return torch.sigmoid(x)

def _layernorm(x, axis=-1, eps=1e-05):
    m = x.mean(dim=axis, keepdim=True)
    v = x.var(dim=axis, keepdim=True, unbiased=False)
    return (x - m) / torch.sqrt(v + eps)

def _scatter_add(tgt, idx, src, axis=0):
    return tgt.clone().index_add_(axis, idx, src)

def _segment_sum(src, seg, n):
    out = torch.zeros((n,) + src.shape[1:], dtype=src.dtype)
    return out.index_add_(0, seg, src)

def _pad(x, pw):
    flat = tuple((v for pair in reversed(pw) for v in pair))
    return torch.nn.functional.pad(x, flat)
kernel_name = 'adaLN_cond__ssm_conv_h3__geglu_ffn__prompt'

def setup_inputs():

    _w = lambda a: (lambda t: t.to(torch.bfloat16) if t.is_floating_point() else t)(torch.as_tensor(a))

    def _A_setup():
        B, S, D = (1, 2048, 448)
        ks = 4
        return {'q': _w((lambda *s: torch.randn(*s, dtype=torch.bfloat16) * 0.05)(B, S, D)), 'k': _w((lambda *s: torch.randn(*s, dtype=torch.bfloat16) * 0.8)(B, S, D)), 'v': _w((lambda *s: torch.randn(*s, dtype=torch.bfloat16) * 0.8)(B, S, D)), 'shift_k': _w((lambda *s: torch.randn(*s, dtype=torch.bfloat16) * 0.8)(D, ks) * 0.5), 'ssm_k': _w((lambda *s: torch.randn(*s, dtype=torch.bfloat16) * 0.8)(D, S) * (1.0 / S ** 0.5)), 'ssm_D': _w((lambda *s: torch.randn(*s, dtype=torch.bfloat16) * 0.8)(D))}
    _A_in = _A_setup()

    def _B_setup():
        B, S, D, F = (1, 2048, 448, 1792)
        return {'x': _w((lambda *s: torch.randn(*s, dtype=torch.bfloat16) * 0.05)(B, S, D)), 'w_gate': _w((lambda *s: torch.randn(*s, dtype=torch.bfloat16) * 0.05)(D, F)), 'w_up': _w((lambda *s: torch.randn(*s, dtype=torch.bfloat16) * 0.05)(D, F)), 'w_down': _w((lambda *s: torch.randn(*s, dtype=torch.bfloat16) * 0.05)(F, D))}
    _B_in = _B_setup()
    return {'A_q': _A_in['q'], 'A_k': _A_in['k'], 'A_v': _A_in['v'], 'A_shift_k': _A_in['shift_k'], 'A_ssm_k': _A_in['ssm_k'], 'A_ssm_D': _A_in['ssm_D'], 'B_x': _B_in['x'], 'B_w_gate': _B_in['w_gate'], 'B_w_up': _B_in['w_up'], 'B_w_down': _B_in['w_down'], 'c': _w((lambda *s: torch.randn(*s, dtype=torch.bfloat16) * 0.1)(1, 448) * 8.0), 'w_mod': _w((lambda *s: torch.randn(*s, dtype=torch.bfloat16) * 0.1)(448, 6 * 448) * 448 ** (-0.5) * 8.0)}

def reference(A_q, A_k, A_v, A_shift_k, A_ssm_k, A_ssm_D, B_x, B_w_gate, B_w_up, B_w_down, c, w_mod):

    def _A_ref(q, k, v, shift_k, ssm_k, ssm_D):
        B, S, D = q.shape
        ks = shift_k.shape[-1]
        k_pad = _pad(k, ((0, 0), (ks - 1, 0), (0, 0)))
        k_shift = torch.zeros_like(k)
        for t in range(ks):
            k_shift = k_shift + k_pad[:, t:t + S, :] * shift_k[:, ks - 1 - t][None, None, :]
        kv = k_shift * v
        L = 2 * S
        kv_pad = _pad(kv, ((0, 0), (0, S), (0, 0)))
        kf_pad = _pad(ssm_k, ((0, 0), (0, S)))
        kv_f = (lambda x, axes=(-2, -1): torch.fft.rfft2(x.float(), dim=axes))(kv_pad[:, None, :, :], axes=(1, 2))
        kf_f = (lambda x, axes=(-2, -1): torch.fft.rfft2(x.float(), dim=axes))(kf_pad[:, None, :], axes=(1, 2))
        kf_f = (lambda x, *d: x.permute(*d))(kf_f, 1, 2, 0)
        y_f = kv_f * kf_f[None, :, :, :]
        y = (lambda x, s, axes=(-2, -1): torch.fft.irfft2(x, s=s, dim=axes).to(torch.bfloat16))(y_f, (1, L), axes=(1, 2))[:, 0, :S, :]
        y = y + kv * ssm_D[None, None, :]
        return q * y

    def _B_ref(x, w_gate, w_up, w_down):
        return _gelu(x @ w_gate) * (x @ w_up) @ w_down
    x = A_q
    mod = (_silu(c) @ w_mod).reshape(c.shape[0], 6, 1, -1)
    sa, ca, ga, sb, cb, gb = (mod[:, 0].clone(), mod[:, 1].clone(), mod[:, 2].clone(), mod[:, 3].clone(), mod[:, 4].clone(), mod[:, 5].clone())
    h = _layernorm(x, axis=-1) * (1 + ca) + sa
    x = x + ga * _A_ref(h, A_k, A_v, A_shift_k, A_ssm_k, A_ssm_D)
    h = _layernorm(x, axis=-1) * (1 + cb) + sb
    x = x + gb * _B_ref(h, B_w_gate, B_w_up, B_w_down)
    return x
```

```python
import numpy as np
MOD = 0
KVT = 0x10000
YB  = 0x200000
X1  = 0x400000
H2  = 0x600000
WGU = 0x800000
WD  = 0xC00000
G   = 0x1000000

def u16(ws, off, n):
    return ws[off:off+2*n].view(np.uint16)

def check(ws, out, R, inp, from_bf16, cmp):
    m = from_bf16(u16(ws, MOD, 2688)).reshape(6, 448)
    e = R['mod'].clone()
    e[1] = 1 + e[1]; e[4] = 1 + e[4]
    cmp('mod', m, e)
    kvt = from_bf16(u16(ws, KVT, 448*2048)).reshape(448, 64, 32).flip(2).reshape(448, 2048)
    cmp('kvT', kvt.t(), R['kv'])
    p = from_bf16(u16(ws, WGU, 448*3584)).reshape(112, 28, 2, 32, 8)
    wg = inp['B_w_gate']; wu = inp['B_w_up']
    p = p.reshape(112, 28, 2, 2, 2, 8, 8)
    g_ = p[:, :, :, :, 0].permute(1, 2, 5, 0, 3, 4).reshape(448, 1792)
    u_ = p[:, :, :, :, 1].permute(1, 2, 5, 0, 3, 4).reshape(448, 1792)
    cmp('Wg', g_, wg); cmp('Wu', u_, wu)
    p = from_bf16(u16(ws, WD, 1792*448)).reshape(14, 112, 2, 32, 2, 4)
    w_ = p.permute(1, 4, 2, 5, 0, 3).reshape(1792, 448)
    cmp('Wd', w_, inp['B_w_down'])
    yb = from_bf16(u16(ws, YB, 448*2048)).reshape(64, 448, 32).permute(0, 2, 1).reshape(2048, 448)
    cmp('yp', yb, R['yp'])
    x1 = from_bf16(u16(ws, X1, 448*2048)).reshape(2048, 448)
    cmp('x1', x1, R['x1'])
    h2 = from_bf16(u16(ws, H2, 448*2048)).reshape(64, 28, 2, 32, 8).permute(0, 3, 1, 2, 4).reshape(2048, 448)
    cmp('h2', h2, R['h2'])
    g = from_bf16(u16(ws, G, 2048*1792)).reshape(64, 112, 2, 32, 2, 4).permute(0, 3, 1, 4, 2, 5).reshape(2048, 1792)
    cmp('G', g, R['G'])
    cmp('out', from_bf16(out), R['out'])
```

```python
import sys
sys.path.insert(0, "dev")
from layout import MOD, KVT, YB, X1, H2, WGU, WD, G

WS_BYTES = 0x1800000
KA = dict(q=0, k=8, v=16, shift=24, ssm_k=32, ssm_D=40, bx=48, wg=56, wu=64, wd=72, c=80, wmod=88, out=96, dbg=104, ws=112)
NB_SD = 2048*448*2

class Asm:
    def __init__(self):
        self.lines = []
    def __call__(self, s):
        self.lines.append("    " + s)
    def label(self, l):
        self.lines.append(l + ":")
    def c(self, s):
        self.lines.append("    ; " + s)
    def nop(self, n):
        while n > 0:
            k = min(n, 16)
            self("s_nop %d" % (k-1))
            n -= k
    def ldptr(self, sd, name):
        self("s_load_dwordx2 s[%d:%d], s[0:1], %d" % (sd, sd+1, KA[name]))
    def srd(self, sd, sp, nbytes):
        self("s_mov_b32 s%d, s%d" % (sd, sp))
        self("s_and_b32 s%d, s%d, 0xffff" % (sd+1, sp+1))
        self("s_mov_b32 s%d, 0x%x" % (sd+2, nbytes))
        self("s_mov_b32 s%d, 0x00020000" % (sd+3))
    def text(self):
        return "\n".join(self.lines) + "\n"

def vr(a, n):
    return "v[%d:%d]" % (a, a+n-1)
def sr(a, n):
    return "s[%d:%d]" % (a, a+n-1)

def kernel_head(a, name):
    a.lines.append(".globl %s" % name)
    a.lines.append(".p2align 8")
    a.lines.append(".type %s,@function" % name)
    a.label(name)

def kd(name, vgpr, sgpr=102):
    acc = (vgpr + 3)//4*4
    return f""".amdhsa_kernel {name}
  .amdhsa_next_free_vgpr {vgpr}
  .amdhsa_next_free_sgpr {sgpr}
  .amdhsa_accum_offset {acc}
  .amdhsa_group_segment_fixed_size 0
  .amdhsa_kernarg_size 120
  .amdhsa_user_sgpr_count 2
  .amdhsa_user_sgpr_kernarg_segment_ptr 1
  .amdhsa_system_sgpr_workgroup_id_x 1
.end_amdhsa_kernel
"""

def unpack(a, dlo, dhi, src):
    a("v_lshlrev_b32 v%d, 16, v%d" % (dlo, src))
    a("v_and_b32 v%d, 0xffff0000, v%d" % (dhi, src))

def rnd2(a, lo, hi, tmp):
    a("v_cvt_pk_bf16_f32 v%d, v%d, v%d" % (tmp, lo, hi))
    unpack(a, lo, hi, tmp)

N_KV, N_MOD, N_REP = 224, 42, 147
def gen_k0(a):
    name = "prep_kernel"
    kernel_head(a, name)
    a.ldptr(4, 'ws')
    a("s_cmp_lt_u32 s2, %d" % N_KV)
    a("s_cbranch_scc1 K0_KV")
    a("s_cmp_lt_u32 s2, %d" % (N_KV+N_MOD))
    a("s_cbranch_scc1 K0_MOD")
    a("s_cmp_lt_u32 s2, %d" % (N_KV+N_MOD+N_REP))
    a("s_cbranch_scc1 K0_REP")
    a("s_endpgm")
    a.label("K0_KV")
    a.ldptr(6, 'k'); a.ldptr(24, 'v'); a.ldptr(26, 'shift')
    a("s_mov_b32 s30, 0x24924925")
    a("s_mul_hi_u32 s31, s2, s30")
    a("s_mul_i32 s32, s31, 7")
    a("s_sub_u32 s32, s2, s32")
    a("s_lshl_b32 s33, s31, 6")
    a("v_lshrrev_b32 v1, 5, v0")
    a("v_lshl_add_u32 v1, v1, 3, s33")
    a("v_and_b32 v5, 31, v0")
    a("s_lshl_b32 s34, s32, 7")
    a("v_lshl_add_u32 v6, v5, 2, s34")
    a("s_movk_i32 s35, 896")
    a("v_mad_u32_u24 v2, v1, s35, v6")
    a("v_add_u32 v3, %d, v2" % (5*896))
    a("v_subrev_u32 v4, %d, v2" % (3*896))
    a("v_lshlrev_b32 v7, 2, v6")
    a("s_waitcnt lgkmcnt(0)")
    a.srd(8, 6, NB_SD); a.srd(12, 24, NB_SD); a.srd(16, 26, 448*8); a.srd(20, 4, WS_BYTES)
    a("buffer_load_dwordx4 v[32:35], v7, s[16:19], 0 offen")
    for i in range(3):
        a("buffer_load_dword v%d, v4, s[8:11], 0 offen offset:%d" % (10+i, i*896))
    for i in range(5):
        a("buffer_load_dword v%d, v2, s[8:11], 0 offen offset:%d" % (13+i, i*896))
    for i in range(3):
        a("buffer_load_dword v%d, v3, s[8:11], 0 offen offset:%d" % (18+i, i*896))
    for i in range(5):
        a("buffer_load_dword v%d, v2, s[12:15], 0 offen offset:%d" % (22+i, i*896))
    for i in range(3):
        a("buffer_load_dword v%d, v3, s[12:15], 0 offen offset:%d" % (27+i, i*896))
    a("v_lshrrev_b32 v8, 5, v1")
    a("v_lshlrev_b32 v8, 6, v8")
    a("v_bfe_u32 v9, v1, 3, 2")
    a("v_sub_u32 v9, 3, v9")
    a("v_lshl_add_u32 v8, v9, 4, v8")
    a("v_lshl_add_u32 v8, v6, 11, v8")
    a("v_add_u32 v8, 0x%x, v8" % KVT)
    a("s_waitcnt vmcnt(19)")
    a("v_lshlrev_b32 v78, 16, v32"); a("v_lshlrev_b32 v79, 16, v34")
    a("v_and_b32 v80, 0xffff0000, v32"); a("v_and_b32 v81, 0xffff0000, v34")
    a("v_lshlrev_b32 v82, 16, v33"); a("v_lshlrev_b32 v83, 16, v35")
    a("v_and_b32 v84, 0xffff0000, v33"); a("v_and_b32 v85, 0xffff0000, v35")
    a("s_waitcnt vmcnt(8)")
    for i in range(11):
        unpack(a, 40+2*i, 41+2*i, 10+i)
    a("s_waitcnt vmcnt(0)")
    for i in range(8):
        unpack(a, 62+2*i, 63+2*i, 22+i)
    def wf(j): return vr(78+2*j, 2)
    def kf(i): return vr(40+2*i, 2)
    for ob in range(0, 8, 4):
        accs = [116+6*t for t in range(4)]
        for t in range(4):
            o = ob+t; A = accs[t]
            a("v_pk_mul_f32 %s, %s, %s" % (vr(A, 2), kf(o), wf(3)))
        for t in range(4):
            A = accs[t]; rnd2(a, A, A+1, A+4)
        for j in range(1, 4):
            for t in range(4):
                o = ob+t; A = accs[t]
                a("v_pk_mul_f32 %s, %s, %s" % (vr(A+2, 2), kf(o+j), wf(3-j)))
            for t in range(4):
                A = accs[t]; rnd2(a, A+2, A+3, A+4)
            for t in range(4):
                A = accs[t]
                a("v_pk_add_f32 %s, %s, %s" % (vr(A, 2), vr(A, 2), vr(A+2, 2)))
            for t in range(4):
                A = accs[t]; rnd2(a, A, A+1, A+4)
        for t in range(4):
            o = ob+t; A = accs[t]
            a("v_pk_mul_f32 %s, %s, %s" % (vr(92+2*o, 2), vr(A, 2), vr(62+2*o, 2)))
    for c in range(2):
        for j in range(4):
            a("v_cvt_pk_bf16_f32 v%d, v%d, v%d" % (108+4*c+j, 92+2*(7-2*j)+c, 92+2*(6-2*j)+c))
    a("buffer_store_dwordx4 v[108:111], v8, s[20:23], 0 offen")
    a("v_add_u32 v9, 4096, v8")
    a("buffer_store_dwordx4 v[112:115], v9, s[20:23], 0 offen")
    a("s_endpgm")
    a.label("K0_MOD")
    a.ldptr(6, 'c'); a.ldptr(24, 'wmod')
    a("s_sub_u32 s30, s2, %d" % N_KV)
    a("s_lshl_b32 s31, s30, 7")
    a("v_and_b32 v1, 7, v0")
    a("v_lshrrev_b32 v2, 3, v0")
    a("s_mov_b32 s32, %d" % (14*5376))
    a("v_mul_lo_u32 v3, v2, s32")
    a("v_lshl_add_u32 v3, v1, 4, v3")
    a("v_add_u32 v3, s31, v3")
    a("v_mul_u32_u24 v4, 28, v2")
    a("s_waitcnt lgkmcnt(0)")
    a.srd(8, 6, 896); a.srd(12, 24, 448*5376); a.srd(20, 4, WS_BYTES)
    for j in range(7):
        a("buffer_load_dword v%d, v4, s[8:11], 0 offen offset:%d" % (10+j, 4*j))
    a("s_mov_b32 s33, 0")
    for i in range(14):
        a("buffer_load_dwordx4 %s, v3, s[12:15], s33 offen" % vr(20+4*i, 4))
        a("s_add_u32 s33, s33, 5376")
    a("s_waitcnt vmcnt(14)")
    for j in range(7):
        unpack(a, 80+2*j, 81+2*j, 10+j)
    a("s_mov_b32 s34, 0xbfb8aa3b")
    for i in range(14):
        a("v_mul_f32 v%d, s34, v%d" % (96+i, 80+i))
    for i in range(14):
        a("v_exp_f32 v%d, v%d" % (96+i, 96+i))
    a.nop(1)
    for i in range(14):
        a("v_add_f32 v%d, 1.0, v%d" % (96+i, 96+i))
    for i in range(14):
        a("v_rcp_f32 v%d, v%d" % (96+i, 96+i))
    a.nop(1)
    for i in range(14):
        a("v_mul_f32 v%d, v%d, v%d" % (80+i, 80+i, 96+i))
    for j in range(7):
        rnd2(a, 80+2*j, 81+2*j, 96+j)
    for e in range(8):
        a("v_mov_b32 v%d, 0" % (112+e))
    for i in range(14):
        a("s_waitcnt vmcnt(%d)" % (13-i))
        for c in range(4):
            unpack(a, 120+2*c, 121+2*c, 20+4*i+c)
        for e in range(8):
            a("v_fmac_f32 v%d, v%d, v%d" % (112+e, 80+i, 120+e))
    a("v_lshlrev_b32 v5, 5, v0")
    a("ds_write_b128 v5, v[112:115]")
    a("ds_write_b128 v5, v[116:119] offset:16")
    a("s_waitcnt lgkmcnt(0)")
    a("s_barrier")
    a("v_cmp_gt_u32 vcc, 64, v0")
    a("s_and_saveexec_b64 s[36:37], vcc")
    a("s_cbranch_execz K0_MOD_END")
    a("v_lshlrev_b32 v5, 2, v0")
    for i in range(32):
        a("ds_read_b32 v%d, v5 offset:%d" % (20+i, 256*i))
    a("s_waitcnt lgkmcnt(0)")
    for st in (16, 8, 4, 2, 1):
        for i in range(st):
            a("v_add_f32 v%d, v%d, v%d" % (20+i, 20+i, 20+i+st))
    a("v_cvt_pk_bf16_f32 v21, v20, v20")
    a("v_lshlrev_b32 v22, 16, v21")
    a("v_add_f32 v22, 1.0, v22")
    a("v_cvt_pk_bf16_f32 v22, v22, v22")
    a("s_mov_b32 s32, 0x24924925")
    a("s_mul_hi_u32 s33, s30, s32")
    a("s_cmp_eq_u32 s33, 1")
    a("s_cselect_b32 s34, 1, 0")
    a("s_cmp_eq_u32 s33, 4")
    a("s_cselect_b32 s34, 1, s34")
    a("s_cmp_eq_u32 s34, 1")
    a("s_cbranch_scc0 K0_MOD_ST")
    a("v_mov_b32 v21, v22")
    a.label("K0_MOD_ST")
    a("v_lshl_add_u32 v6, v0, 1, s31")
    if MOD: a("v_add_u32 v6, 0x%x, v6" % MOD)
    a("buffer_store_short v21, v6, s[20:23], 0 offen")
    a.label("K0_MOD_END")
    a("s_endpgm")
    a.label("K0_REP")
    a.ldptr(6, 'wg'); a.ldptr(24, 'wu'); a.ldptr(26, 'wd')
    a("s_sub_u32 s30, s2, %d" % (N_KV+N_MOD))
    a("v_lshrrev_b32 v1, 6, v0")
    a.nop(1)
    a("v_readfirstlane_b32 s31, v1")
    a("v_and_b32 v1, 63, v0")
    a("s_mov_b32 s40, 0x05040100")
    a("s_mov_b32 s41, 0x07060302")
    a("s_waitcnt lgkmcnt(0)")
    a.srd(20, 4, WS_BYTES)
    a("s_cmp_ge_u32 s30, 98")
    a("s_cbranch_scc1 K0_REP_WD")
    a("s_cmp_ge_u32 s30, 49")
    a("s_cselect_b32 s32, 1, 0")
    a("s_cselect_b32 s6, s24, s6")
    a("s_cselect_b32 s7, s25, s7")
    a("s_mul_i32 s33, s32, 49")
    a("s_sub_u32 s30, s30, s33")
    a.srd(8, 6, 448*3584)
    a("s_lshl_b32 s30, s30, 2")
    a("s_add_u32 s30, s30, s31")
    a("s_mov_b32 s33, 0x24924925")
    a("s_mul_hi_u32 s34, s30, s33")
    a("s_mul_i32 s35, s34, 7")
    a("s_sub_u32 s35, s30, s35")
    a("v_and_b32 v2, 31, v1")
    a("v_lshrrev_b32 v3, 5, v1")
    a("s_lshl_b32 s36, s35, 5")
    a("v_add_u32 v2, s36, v2")
    a("s_lshl_b32 s37, s34, 1")
    a("v_add_u32 v4, s37, v3")
    a("s_mov_b32 s38, %d" % (8*3584))
    a("v_mul_lo_u32 v5, v4, s38")
    a("v_lshl_add_u32 v5, v2, 4, v5")
    a("s_mov_b32 s39, 0")
    for e in range(8):
        a("buffer_load_dwordx4 %s, v5, s[8:11], s39 offen" % vr(16+4*e, 4))
        a("s_add_u32 s39, s39, 3584")
    a("v_lshrrev_b32 v6, 1, v2")
    a("v_mul_u32_u24 v6, 28, v6")
    a("v_add_u32 v6, s34, v6")
    a("v_lshlrev_b32 v6, 10, v6")
    a("v_and_b32 v7, 1, v2")
    a("v_lshlrev_b32 v7, 8, v7")
    a("v_lshl_add_u32 v7, v3, 9, v7")
    a("v_add_u32 v6, v6, v7")
    a("s_lshl_b32 s42, s32, 7")
    a("s_add_u32 s42, s42, 0x%x" % WGU)
    a("v_add_u32 v6, s42, v6")
    a("s_branch K0_REP_TR")
    a.label("K0_REP_WD")
    a("s_sub_u32 s30, s30, 98")
    a.srd(8, 26, 1792*896)
    a("s_lshl_b32 s30, s30, 2")
    a("s_add_u32 s30, s30, s31")
    a("s_mov_b32 s33, 0x24924925")
    a("s_mul_hi_u32 s34, s30, s33")
    a("s_mul_i32 s35, s34, 7")
    a("s_sub_u32 s35, s30, s35")
    a("v_and_b32 v2, 7, v1")
    a("v_lshrrev_b32 v3, 3, v1")
    a("s_lshl_b32 s36, s35, 3")
    a("v_add_u32 v2, s36, v2")
    a("s_lshl_b32 s37, s34, 3")
    a("v_add_u32 v4, s37, v3")
    a("v_lshrrev_b32 v8, 1, v4")
    a("v_and_b32 v9, 1, v4")
    a("v_lshlrev_b32 v5, 4, v8")
    a("v_lshl_add_u32 v5, v9, 2, v5")
    a("s_movk_i32 s38, 896")
    a("v_mul_lo_u32 v5, v5, s38")
    a("v_lshl_add_u32 v5, v2, 4, v5")
    a("s_movk_i32 s39, %d" % (8*896))
    for e in range(4):
        a("buffer_load_dwordx4 %s, v5, s[8:11], 0 offen offset:%d" % (vr(16+4*e, 4), e*896))
    for e in range(4):
        a("buffer_load_dwordx4 %s, v5, s[8:11], s39 offen offset:%d" % (vr(32+4*e, 4), e*896))
    a("v_lshrrev_b32 v6, 2, v2")
    a("v_mul_u32_u24 v6, 112, v6")
    a("v_add_u32 v6, v8, v6")
    a("v_lshlrev_b32 v6, 10, v6")
    a("v_and_b32 v7, 3, v2")
    a("v_lshlrev_b32 v7, 7, v7")
    a("v_lshl_add_u32 v7, v9, 9, v7")
    a("v_add_u32 v6, v6, v7")
    a("v_add_u32 v6, 0x%x, v6" % WD)
    a.label("K0_REP_TR")
    a("s_waitcnt vmcnt(0)")
    for i in range(8):
        for j in range(4):
            a("v_perm_b32 v%d, v%d, v%d, s%d" % (48+4*i+j, 16+4*(2*j+1)+(i >> 1), 16+4*(2*j)+(i >> 1), 40+(i & 1)))
        a("buffer_store_dwordx4 %s, v6, s[20:23], 0 offen offset:%d" % (vr(48+4*i, 4), 16*i))
    a("s_endpgm")
    return name, 144

CS = 4416
U_OFF = 8*CS
K1_LDS = U_OFF + 96*80
def gen_k1(a):
    name = "conv_kernel"
    kernel_head(a, name)
    a("s_cmp_ge_u32 s2, 448")
    a("s_cbranch_scc1 K1_END")
    a.ldptr(4, 'ws'); a.ldptr(6, 'ssm_k'); a.ldptr(24, 'ssm_D')
    a("s_and_b32 s30, s2, 7")
    a("s_mul_i32 s30, s30, 56")
    a("s_lshr_b32 s31, s2, 3")
    a("s_add_u32 s30, s30, s31")
    a("v_lshrrev_b32 v1, 6, v0")
    a.nop(1)
    a("v_readfirstlane_b32 s31, v1")
    a("s_waitcnt lgkmcnt(0)")
    a("s_lshl_b32 s32, s30, 12")
    a("s_add_u32 s6, s6, s32")
    a("s_addc_u32 s7, s7, 0")
    a.srd(8, 6, 4096); a.srd(20, 4, WS_BYTES)
    a("s_lshl_b32 s33, s30, 1")
    a("s_and_b32 s33, s33, 0xfffffffc")
    a("s_add_u32 s24, s24, s33")
    a("s_addc_u32 s25, s25, 0")
    a("s_load_dword s34, s[24:25], 0")
    a("v_lshlrev_b32 v2, 4, v0")
    a("s_add_u32 s35, s32, 0x%x" % KVT)
    a("buffer_load_dwordx4 v[4:7], v2, s[20:23], s35 offen")
    a("v_subrev_u32 v3, 64, v2")
    a("v_subrev_u32 v8, 48, v2")
    a("buffer_load_dwordx4 v[16:19], v3, s[8:11], 0 offen")
    a("buffer_load_dwordx4 v[20:23], v8, s[8:11], 0 offen")
    a("v_add_u32 v9, %d, v2" % (4096-64))
    a("buffer_load_dwordx4 v[56:59], v9, s[8:11], 0 offen")
    a("buffer_load_dwordx4 v[60:63], v9, s[8:11], 0 offen offset:16")
    for i in range(4): a("v_mov_b32 v%d, 0" % (12+i))
    a("v_add_u32 v10, %d, v2" % U_OFF)
    a("v_cmp_gt_u32 vcc, 160, v0")
    a("s_and_saveexec_b64 s[36:37], vcc")
    a("ds_write_b128 v10, v[12:15]")
    a("s_mov_b64 exec, s[36:37]")
    a("v_lshrrev_b32 v10, 2, v0")
    a("v_mul_u32_u24 v10, 80, v10")
    a("v_and_b32 v11, 3, v0")
    a("v_lshl_add_u32 v10, v11, 4, v10")
    a("s_waitcnt vmcnt(4)")
    a("ds_write_b128 v10, v[4:7] offset:%d" % (U_OFF + 32*80))
    def build(D, vaddr):
        XA, XB, DS = 24, 33, 42
        for j in range(7):
            a("v_alignbyte_b32 v%d, v%d, v%d, 2" % (XA+j, D+j+1, D+j))
        for j in range(1, 7):
            a("v_mov_b32 v%d, v%d" % (XB+j, XA+j))
        for j in range(1, 7):
            a("v_mov_b32 v%d, v%d" % (DS+j-1, D+j))
        for c in range(8):
            if c & 1:
                j0 = (c+1)//2
                src = (D+j0) if (j0 % 2 == 0) else (DS+j0-1)
            else:
                j0 = c//2
                src = (XA+j0) if (j0 % 2 == 0) else (XB+j0)
            assert src % 2 == 0
            a("ds_write_b128 v%d, %s offset:%d" % (vaddr, vr(src, 4), c*CS))
    a("s_waitcnt vmcnt(2)")
    build(16, 2)
    a("s_waitcnt vmcnt(0)")
    a("v_cmp_gt_u32 vcc, 3, v0")
    a("s_and_saveexec_b64 s[36:37], vcc")
    a("s_cbranch_execz K1_SKIP2")
    a("v_add_u32 v3, 4096, v2")
    build(56, 3)
    a.label("K1_SKIP2")
    a("s_mov_b64 exec, s[36:37]")
    a("v_and_b32 v8, 31, v0")
    a("v_bfe_u32 v9, v0, 5, 1")
    a("v_and_b32 v10, 7, v8")
    a("v_lshrrev_b32 v11, 3, v8")
    a("s_movk_i32 s38, %d" % CS)
    a("v_mul_lo_u32 v10, v10, s38")
    a("v_add_u32 v11, v11, v9")
    a("v_lshl_add_u32 v10, v11, 4, v10")
    a("s_lshl_b32 s39, s31, 9")
    a("v_add_u32 v10, s39, v10")
    a("s_lshl_b32 s39, s31, 3")
    a("s_sub_u32 s39, 25, s39")
    a("v_add_u32 v11, s39, v8")
    a("v_mul_u32_u24 v11, 80, v11")
    a("v_lshl_add_u32 v11, v9, 4, v11")
    a("v_add_u32 v11, %d, v11" % U_OFF)
    ACC0, ACC1, ACC2 = 64, 80, 96
    for i in range(48): a("v_mov_b32 v%d, 0" % (ACC0+i))
    a("s_waitcnt lgkmcnt(0)")
    a("s_barrier")
    steps = [(i, ks) for i in range(8) for ks in range(2)]
    FR = [112, 128]
    def rd(step, base):
        i, ks = step
        of = 32*(2*i - ks + 1)
        ou = (7-i)*80 + 32*(1-ks)
        a("ds_read_b128 %s, v10 offset:%d" % (vr(base, 4), of))
        a("ds_read_b128 %s, v11 offset:%d" % (vr(base+8, 4), ou))
        a("ds_read_b128 %s, v10 offset:%d" % (vr(base+4, 4), of+2048))
        a("ds_read_b128 %s, v11 offset:%d" % (vr(base+12, 4), ou+2560))
    rd(steps[0], FR[0])
    for n, st in enumerate(steps):
        b = FR[n & 1]
        if n+1 < len(steps):
            rd(steps[n+1], FR[(n+1) & 1])
            a("s_waitcnt lgkmcnt(4)")
        else:
            a("s_waitcnt lgkmcnt(0)")
        a("v_mfma_f32_32x32x16_bf16 %s, %s, %s, %s" % (vr(ACC0, 16), vr(b, 4), vr(b+8, 4), vr(ACC0, 16)))
        a("v_mfma_f32_32x32x16_bf16 %s, %s, %s, %s" % (vr(ACC1, 16), vr(b+4, 4), vr(b+8, 4), vr(ACC1, 16)))
        a("v_mfma_f32_32x32x16_bf16 %s, %s, %s, %s" % (vr(ACC2, 16), vr(b, 4), vr(b+12, 4), vr(ACC2, 16)))
    a("v_mul_u32_u24 v12, 144, v8")
    a("v_lshl_add_u32 v12, v9, 4, v12")
    a("s_mul_i32 s39, s31, 9216")
    a("v_add_u32 v12, s39, v12")
    a("s_barrier")
    a.nop(12)
    for r in range(16):
        a("v_add_f32 v%d, v%d, v%d" % (ACC1+r, ACC1+r, ACC2+r))
    for q in range(4):
        a("ds_write_b128 v12, %s offset:%d" % (vr(ACC0+4*q, 4), 32*q))
    for q in range(4):
        a("ds_write_b128 v12, %s offset:%d" % (vr(ACC1+4*q, 4), 4608+32*q))
    a("v_lshrrev_b32 v13, 2, v0")
    a("v_and_b32 v14, 3, v0")
    a("v_sub_u32 v14, 3, v14")
    a("v_mul_u32_u24 v15, 144, v13")
    a("v_lshl_add_u32 v15, v14, 5, v15")
    a("s_waitcnt lgkmcnt(0)")
    a("s_barrier")
    for w in range(4):
        a("ds_read_b128 %s, v15 offset:%d" % (vr(16+8*w, 4), 9216*w))
        a("ds_read_b128 %s, v15 offset:%d" % (vr(20+8*w, 4), 9216*w+16))
    a("s_and_b32 s35, s30, 1")
    a("s_lshl_b32 s35, s35, 4")
    a("s_lshr_b32 s34, s34, s35")
    a("s_lshl_b32 s34, s34, 16")
    for j in range(4):
        unpack(a, 48+7-2*j, 48+6-2*j, 4+j)
    for i in range(8):
        a("v_mul_f32 v%d, s34, v%d" % (48+i, 48+i))
    for i in range(0, 8, 2):
        rnd2(a, 48+i, 49+i, 56)
    a("v_lshl_add_u32 v13, v13, 2, v14")
    a("s_movk_i32 s38, 7168")
    a("v_mul_lo_u32 v13, v13, s38")
    a("s_lshl_b32 s39, s30, 4")
    a("s_add_u32 s39, s39, 0x%x" % YB)
    a("s_waitcnt lgkmcnt(0)")
    for i in range(8):
        a("v_add_f32 v%d, v%d, v%d" % (16+i, 16+i, 24+i))
        a("v_add_f32 v%d, v%d, v%d" % (32+i, 32+i, 40+i))
    for i in range(8):
        a("v_add_f32 v%d, v%d, v%d" % (16+i, 16+i, 32+i))
    for i in range(0, 8, 2):
        rnd2(a, 16+i, 17+i, 56)
    for i in range(8):
        a("v_add_f32 v%d, v%d, v%d" % (16+i, 16+i, 48+i))
    for j in range(4):
        a("v_cvt_pk_bf16_f32 v%d, v%d, v%d" % (60+j, 16+2*j, 17+2*j))
    a("buffer_store_dwordx4 v[60:63], v13, s[20:23], s39 offen")
    a.label("K1_END")
    a("s_endpgm")
    return name, 144

def wave_sum(a, v, t, s0, dst):
    a.nop(2)
    a("v_add_f32_dpp v%d, v%d, v%d quad_perm:[1,0,3,2] row_mask:0xf bank_mask:0xf" % (t, v, v))
    a.nop(2)
    a("v_add_f32_dpp v%d, v%d, v%d quad_perm:[2,3,0,1] row_mask:0xf bank_mask:0xf" % (v, t, t))
    a.nop(2)
    a("v_add_f32_dpp v%d, v%d, v%d row_half_mirror row_mask:0xf bank_mask:0xf" % (t, v, v))
    a.nop(2)
    a("v_add_f32_dpp v%d, v%d, v%d row_mirror row_mask:0xf bank_mask:0xf" % (v, t, t))
    a.nop(1)
    for i in range(4):
        a("v_readlane_b32 s%d, v%d, %d" % (s0+i, v, 16*i))
    a.nop(2)
    a("v_mov_b32 v%d, s%d" % (dst, s0))
    a("v_add_f32 v%d, s%d, v%d" % (dst, s0+1, dst))
    a("v_mov_b32 v%d, s%d" % (t, s0+2))
    a("v_add_f32 v%d, s%d, v%d" % (t, s0+3, t))
    a("v_add_f32 v%d, v%d, v%d" % (dst, dst, t))

def layernorm(a, X, N, T):
    a("v_add_f32 v%d, v%d, v%d" % (T, X, X+1))
    a("v_add_f32 v%d, v%d, v%d" % (T+1, X+2, X+3))
    a("v_add_f32 v%d, v%d, v%d" % (T+2, X+4, X+5))
    a("v_add_f32 v%d, v%d, v%d" % (T+3, X+6, X+7))
    a("v_add_f32 v%d, v%d, v%d" % (T, T, T+1))
    a("v_add_f32 v%d, v%d, v%d" % (T+2, T+2, T+3))
    a("v_add_f32 v%d, v%d, v%d" % (T, T, T+2))
    a("v_cndmask_b32 v%d, 0, v%d, s[40:41]" % (T, T))
    wave_sum(a, T, T+1, 44, T+2)
    a("v_mul_f32 v%d, s42, v%d" % (T+2, T+2))
    for i in range(8):
        a("v_sub_f32 v%d, v%d, v%d" % (N+i, X+i, T+2))
    a("v_mul_f32 v%d, v%d, v%d" % (T, N, N))
    a("v_mul_f32 v%d, v%d, v%d" % (T+1, N+1, N+1))
    for i in range(2, 8, 2):
        a("v_fmac_f32 v%d, v%d, v%d" % (T, N+i, N+i))
        a("v_fmac_f32 v%d, v%d, v%d" % (T+1, N+i+1, N+i+1))
    a("v_add_f32 v%d, v%d, v%d" % (T, T, T+1))
    a("v_cndmask_b32 v%d, 0, v%d, s[40:41]" % (T, T))
    wave_sum(a, T, T+1, 44, T+3)
    a("v_mul_f32 v%d, s42, v%d" % (T+3, T+3))
    rnd2(a, T+2, T+3, T)
    a("v_add_f32 v%d, s43, v%d" % (T+3, T+3))
    a("v_cvt_pk_bf16_f32 v%d, v%d, v%d" % (T, T+3, T+3))
    a("v_lshlrev_b32 v%d, 16, v%d" % (T+3, T))
    a("v_sqrt_f32 v%d, v%d" % (T+3, T+3))
    a.nop(1)
    a("v_cvt_pk_bf16_f32 v%d, v%d, v%d" % (T, T+3, T+3))
    a("v_lshlrev_b32 v%d, 16, v%d" % (T+3, T))
    a("v_rcp_f32 v%d, v%d" % (T+3, T+3))
    for i in range(8):
        a("v_sub_f32 v%d, v%d, v%d" % (N+i, X+i, T+2))
    for i in range(0, 8, 2):
        rnd2(a, N+i, N+i+1, T+(i//2 & 1))
    for i in range(8):
        a("v_mul_f32 v%d, v%d, v%d" % (N+i, N+i, T+3))
    for i in range(0, 8, 2):
        rnd2(a, N+i, N+i+1, T+(i//2 & 1))

K2_LDS = 448*16 + 56*16
def gen_k2(a):
    name = "ln_kernel"
    kernel_head(a, name)
    a("s_cmp_ge_u32 s2, 256")
    a("s_cbranch_scc1 K2_END")
    a.ldptr(4, 'ws'); a.ldptr(6, 'q')
    a("v_lshrrev_b32 v1, 6, v0")
    a("v_and_b32 v2, 63, v0")
    a("v_cmp_gt_u32 s[40:41], 56, v2")
    a("s_mov_b32 s42, 0x3b124925")
    a("s_mov_b32 s43, 0x3727c5ac")
    a("s_lshl_b32 s30, s2, 3")
    a("v_add_u32 v3, s30, v1")
    a("s_movk_i32 s31, 896")
    a("v_mul_lo_u32 v4, v3, s31")
    a("v_lshl_add_u32 v4, v2, 4, v4")
    a("v_lshlrev_b32 v5, 4, v2")
    a("v_lshlrev_b32 v6, 4, v0")
    a("s_mul_i32 s32, s2, 7168")
    a("s_add_u32 s32, s32, 0x%x" % YB)
    for i in range(8, 36): a("v_mov_b32 v%d, 0" % i)
    a("s_waitcnt lgkmcnt(0)")
    a.srd(8, 6, NB_SD); a.srd(20, 4, WS_BYTES)
    a("v_cmp_gt_u32 vcc, 448, v0")
    a("s_and_saveexec_b64 s[36:37], vcc")
    a("buffer_load_dwordx4 v[8:11], v6, s[20:23], s32 offen")
    a("s_mov_b64 exec, s[40:41]")
    a("buffer_load_dwordx4 v[12:15], v4, s[8:11], 0 offen")
    for sec in range(5):
        a("buffer_load_dwordx4 %s, v5, s[20:23], 0 offen offset:%d" % (vr(16+4*sec, 4), MOD + 896*sec))
    a("s_mov_b64 exec, s[36:37]")
    a("v_lshrrev_b32 v7, 3, v0")
    a("v_lshl_add_u32 v7, v7, 4, v6")
    a("s_and_saveexec_b64 s[36:37], vcc")
    a("s_waitcnt vmcnt(6)")
    a("ds_write_b128 v7, v[8:11]")
    a("s_mov_b64 exec, s[36:37]")
    X, N, Y, M, T = 40, 48, 56, 64, 110
    for i in range(8): a("v_mov_b32 v%d, 0" % (Y+i))
    a("v_mul_u32_u24 v7, 144, v2")
    a("v_lshl_add_u32 v7, v1, 1, v7")
    a("s_waitcnt lgkmcnt(0)")
    a("s_barrier")
    a("s_mov_b64 exec, s[40:41]")
    for i in range(8):
        a("ds_read_u16_d16_hi v%d, v7 offset:%d" % (Y+i, 16*i))
    a("s_mov_b64 exec, -1")
    a("s_waitcnt vmcnt(0)")
    for c in range(4):
        unpack(a, X+2*c, X+2*c+1, 12+c)
    for sec in range(5):
        for c in range(4):
            unpack(a, M+8*sec+2*c, M+8*sec+2*c+1, 16+4*sec+c)
    SA, CA, GA, SB, CB = [M+8*i for i in range(5)]
    def rows(f):
        for i in range(8): f(i)
    def rnd8(R):
        for i in range(0, 8, 2): rnd2(a, R+i, R+i+1, T+(i//2 & 1))
    layernorm(a, X, N, T)
    rows(lambda i: a("v_mul_f32 v%d, v%d, v%d" % (N+i, N+i, CA+i))); rnd8(N)
    rows(lambda i: a("v_add_f32 v%d, v%d, v%d" % (N+i, N+i, SA+i))); rnd8(N)
    a("s_waitcnt lgkmcnt(0)")
    rows(lambda i: a("v_mul_f32 v%d, v%d, v%d" % (N+i, N+i, Y+i))); rnd8(N)
    rows(lambda i: a("v_mul_f32 v%d, v%d, v%d" % (N+i, N+i, GA+i))); rnd8(N)
    rows(lambda i: a("v_add_f32 v%d, v%d, v%d" % (X+i, X+i, N+i)))
    for j in range(4):
        a("v_cvt_pk_bf16_f32 v%d, v%d, v%d" % (104+j, X+2*j, X+2*j+1))
    for j in range(4):
        unpack(a, X+2*j, X+2*j+1, 104+j)
    a("v_add_u32 v4, 0x%x, v4" % X1)
    a("s_mov_b64 exec, s[40:41]")
    a("buffer_store_dwordx4 v[104:107], v4, s[20:23], 0 offen")
    a("s_mov_b64 exec, -1")
    layernorm(a, X, N, T)
    rows(lambda i: a("v_mul_f32 v%d, v%d, v%d" % (N+i, N+i, CB+i))); rnd8(N)
    rows(lambda i: a("v_add_f32 v%d, v%d, v%d" % (N+i, N+i, SB+i)))
    for j in range(4):
        a("v_cvt_pk_bf16_f32 v%d, v%d, v%d" % (116+j, N+2*j, N+2*j+1))
    a("v_lshrrev_b32 v5, 5, v3")
    a("s_movk_i32 s31, 1792")
    a("v_mul_lo_u32 v5, v5, s31")
    a("v_lshl_add_u32 v5, v2, 5, v5")
    a("v_and_b32 v6, 31, v3")
    a("v_add_u32 v5, v5, v6")
    a("v_lshlrev_b32 v5, 4, v5")
    a("v_add_u32 v5, 0x%x, v5" % H2)
    a("s_mov_b64 exec, s[40:41]")
    a("buffer_store_dwordx4 v[116:119], v5, s[20:23], 0 offen")
    a.label("K2_END")
    a("s_endpgm")
    return name, 128

K3_LDS = 4*28*1024
def gen_k3(a):
    name = "gemm1_kernel"
    kernel_head(a, name)
    a("s_cmp_ge_u32 s2, 224")
    a("s_cbranch_scc1 K3_END")
    a.ldptr(4, 'ws')
    a("s_and_b32 s30, s2, 15")
    a("s_lshr_b32 s31, s2, 4")
    a("v_lshrrev_b32 v1, 6, v0")
    a.nop(1)
    a("v_readfirstlane_b32 s32, v1")
    a("v_lshlrev_b32 v2, 4, v0")
    a("v_and_b32 v3, 63, v0")
    a("v_lshlrev_b32 v3, 4, v3")
    a("s_waitcnt lgkmcnt(0)")
    a.srd(20, 4, WS_BYTES)
    a("s_mul_i32 s33, s30, %d" % K3_LDS)
    a("s_add_u32 s33, s33, 0x%x" % H2)
    ACC = 0;
    STG = 16
    for i in range(28):
        a("buffer_load_dwordx4 %s, v2, s[20:23], s33 offen" % vr(STG+4*i, 4))
        a("s_add_u32 s33, s33, 4096")
    a("s_lshl_b32 s34, s31, 3")
    a("s_lshl_b32 s35, s32, 1")
    a("s_add_u32 s34, s34, s35")
    a("s_mul_i32 s34, s34, %d" % (28*1024))
    a("s_add_u32 s34, s34, 0x%x" % WGU)
    a("s_add_u32 s35, s34, %d" % (28*1024))
    AD = 4
    AR = 192
    BR = 224
    ACC = 64
    def lda(ks):
        slot = ks % AD
        a("buffer_load_dwordx4 %s, v3, s[20:23], s34 offen offset:%d" % (vr(AR+8*slot, 4), (ks % 4)*1024))
        a("buffer_load_dwordx4 %s, v3, s[20:23], s35 offen offset:%d" % (vr(AR+8*slot+4, 4), (ks % 4)*1024))
        if ks % 4 == 3:
            a("s_add_u32 s34, s34, 4096")
            a("s_add_u32 s35, s35, 4096")
    for ks in range(AD): lda(ks)
    a("v_add_u32 v5, %d, v2" % (14*4096))
    for i in range(28):
        a("s_waitcnt vmcnt(%d)" % (27-i+2*AD))
        a("ds_write_b128 %s, %s offset:%d" % ("v2" if i < 14 else "v5", vr(STG+4*i, 4), 4096*(i % 14)))
    a("s_waitcnt lgkmcnt(0)")
    for i in range(128): a("v_mov_b32 v%d, 0" % (ACC+i))
    a("s_barrier")
    a("v_add_u32 v4, %d, v3" % (2*28*1024))
    def ldb(ks):
        b = BR + 16*(ks & 1)
        for bt in range(4):
            base = "v3" if bt < 2 else "v4"
            a("ds_read_b128 %s, %s offset:%d" % (vr(b+4*bt, 4), base, ((bt & 1)*28+ks)*1024))
    ldb(0)
    for ks in range(28):
        if ks+1 < 28:
            ldb(ks+1)
        rem = min(AD-1, 27-ks)
        a("s_waitcnt vmcnt(%d) lgkmcnt(%d)" % (2*rem, 4 if ks+1 < 28 else 0))
        b = BR + 16*(ks & 1); s = AR + 8*(ks % AD)
        for at in range(2):
            for bt in range(4):
                acc = ACC + 16*(4*at+bt)
                a("v_mfma_f32_32x32x16_bf16 %s, %s, %s, %s" % (vr(acc, 16), vr(s+4*at, 4), vr(b+4*bt, 4), vr(acc, 16)))
        if ks+AD < 28:
            lda(ks+AD)
    a.nop(12)
    a("s_lshl_b32 s34, s31, 3")
    a("s_lshl_b32 s35, s32, 1")
    a("s_add_u32 s34, s34, s35")
    a("s_mul_i32 s35, s30, %d" % (4*112))
    a("s_add_u32 s34, s34, s35")
    a("s_lshl_b32 s34, s34, 10")
    a("s_add_u32 s34, s34, 0x%x" % G)
    a("s_mov_b32 s40, 0xc0135761")
    a("s_mov_b32 s41, 0xbdd2d3e8")
    T = 8
    for at in range(2):
        for bt in range(4):
            acc = ACC + 16*(4*at+bt)
            gs = [acc+0, acc+1, acc+2, acc+3, acc+8, acc+9, acc+10, acc+11]
            us = [acc+4, acc+5, acc+6, acc+7, acc+12, acc+13, acc+14, acc+15]
            for i in range(0, 8, 2):
                rnd2(a, gs[i], gs[i+1], T+i); rnd2(a, us[i], us[i+1], T+i+1)
            for i in range(8):
                a("v_mul_f32 v%d, v%d, v%d" % (T+i, gs[i], gs[i]))
            for i in range(8):
                a("v_mov_b32 v%d, s40" % (T+8+i))
            for i in range(8):
                a("v_fmac_f32 v%d, s41, v%d" % (T+8+i, T+i))
            for i in range(8):
                a("v_mul_f32 v%d, v%d, v%d" % (T+i, T+8+i, gs[i]))
            for i in range(8):
                a("v_exp_f32 v%d, v%d" % (T+i, T+i))
            for i in range(8):
                a("v_add_f32 v%d, 1.0, v%d" % (T+i, T+i))
            for i in range(8):
                a("v_rcp_f32 v%d, v%d" % (T+i, T+i))
            for i in range(8):
                a("v_mul_f32 v%d, v%d, v%d" % (gs[i], gs[i], T+i))
            for i in range(0, 8, 2):
                rnd2(a, gs[i], gs[i+1], T+i)
            for i in range(8):
                a("v_mul_f32 v%d, v%d, v%d" % (gs[i], gs[i], us[i]))
            o = 24 + 4*((4*at+bt) & 3)
            for j in range(4):
                a("v_cvt_pk_bf16_f32 v%d, v%d, v%d" % (o+j, gs[2*j], gs[2*j+1]))
            a("s_add_u32 s35, s34, %d" % ((bt*112+at)*1024))
            a("buffer_store_dwordx4 %s, v3, s[20:23], s35 offen" % vr(o, 4))
    a.label("K3_END")
    a("s_endpgm")
    return name, 256

K4_RS = 272
K4_LDS = 4*64*K4_RS
def gen_k4(a):
    name = "gemm2_kernel"
    kernel_head(a, name)
    a("s_cmp_ge_u32 s2, 224")
    a("s_cbranch_scc1 K4_END")
    a.ldptr(4, 'ws'); a.ldptr(6, 'out')
    a("s_and_b32 s30, s2, 31")
    a("s_lshr_b32 s31, s2, 5")
    a("v_lshrrev_b32 v1, 6, v0")
    a.nop(1)
    a("v_readfirstlane_b32 s32, v1")
    a("v_and_b32 v3, 63, v0")
    a("v_lshlrev_b32 v3, 4, v3")
    a("s_waitcnt lgkmcnt(0)")
    a.srd(20, 4, WS_BYTES); a.srd(8, 6, NB_SD)
    a("s_mul_i32 s33, s32, %d" % (28*1024))
    a("s_mul_i32 s34, s31, %d" % (2*112*1024))
    a("s_add_u32 s34, s34, s33")
    a("s_add_u32 s34, s34, 0x%x" % WD)
    a("s_add_u32 s35, s34, %d" % (112*1024))
    a("s_mul_i32 s36, s30, %d" % (2*112*1024))
    a("s_add_u32 s36, s36, s33")
    a("s_add_u32 s36, s36, 0x%x" % G)
    a("s_add_u32 s37, s36, %d" % (112*1024))
    D = 6
    ACC = 16; RG = 80
    def ld(ks):
        b = RG + 16*(ks % D)
        for i, sreg in enumerate((34, 36, 35, 37)):
            a("buffer_load_dwordx4 %s, v3, s[20:23], s%d offen offset:%d" % (vr(b+4*i, 4), sreg, (ks % 4)*1024))
        if ks % 4 == 3:
            for sreg in (34, 35, 36, 37):
                a("s_add_u32 s%d, s%d, 4096" % (sreg, sreg))
    for ks in range(D): ld(ks)
    for i in range(64): a("v_mov_b32 v%d, 0" % (ACC+i))
    for ks in range(28):
        rem = min(D-1, 27-ks)
        a("s_waitcnt vmcnt(%d)" % (4*rem))
        b = RG + 16*(ks % D)
        A = [b, b+8]; B = [b+4, b+12]
        for i in range(2):
            for j in range(2):
                acc = ACC + 16*(2*i+j)
                a("v_mfma_f32_32x32x16_bf16 %s, %s, %s, %s" % (vr(acc, 16), vr(A[i], 4), vr(B[j], 4), vr(acc, 16)))
        if ks+D < 28:
            ld(ks+D)
    a("v_lshrrev_b32 v4, 3, v0")
    a("v_and_b32 v5, 7, v0")
    a("s_lshl_b32 s38, s30, 6")
    a("v_add_u32 v6, s38, v4")
    a("s_movk_i32 s39, 896")
    a("v_mul_lo_u32 v6, v6, s39")
    a("v_lshl_add_u32 v6, v5, 4, v6")
    a("s_lshl_b32 s38, s31, 7")
    a("v_add_u32 v6, s38, v6")
    a("v_lshl_add_u32 v7, v5, 4, s38")
    a("s_mov_b32 s40, 0x%x" % X1)
    a("s_mov_b32 s41, 0x%x" % (X1 + 32*896))
    a("buffer_load_dwordx4 v[80:83], v6, s[20:23], s40 offen")
    a("buffer_load_dwordx4 v[84:87], v6, s[20:23], s41 offen")
    a("s_mov_b32 s42, 0x%x" % (MOD + 5*896))
    a("buffer_load_dwordx4 v[88:91], v7, s[20:23], s42 offen")
    a("v_and_b32 v8, 31, v0")
    a("v_bfe_u32 v9, v0, 5, 1")
    a("v_mul_u32_u24 v8, %d, v8" % K4_RS)
    a("v_lshl_add_u32 v8, v9, 4, v8")
    a("s_mul_i32 s38, s32, %d" % (64*K4_RS))
    a("v_add_u32 v8, s38, v8")
    a.nop(12)
    for i in range(2):
        for j in range(2):
            acc = ACC + 16*(2*i+j)
            for q in range(4):
                a("ds_write_b128 v8, %s offset:%d" % (vr(acc+4*q, 4), j*32*K4_RS + i*128 + q*32))
    a("v_mul_u32_u24 v9, %d, v4" % K4_RS)
    a("v_lshl_add_u32 v9, v5, 5, v9")
    a("s_waitcnt lgkmcnt(0)")
    a("s_barrier")
    for it in range(2):
        for w in range(4):
            a("ds_read_b128 %s, v9 offset:%d" % (vr(96+32*it+8*w, 4), w*64*K4_RS + it*32*K4_RS))
            a("ds_read_b128 %s, v9 offset:%d" % (vr(100+32*it+8*w, 4), w*64*K4_RS + it*32*K4_RS + 16))
    a("s_waitcnt vmcnt(0)")
    for c in range(4):
        unpack(a, 16+2*c, 17+2*c, 88+c)
        unpack(a, 24+2*c, 25+2*c, 80+c)
        unpack(a, 32+2*c, 33+2*c, 84+c)
    a("s_waitcnt lgkmcnt(0)")
    for it in range(2):
        P = 96+32*it
        for i in range(8):
            a("v_add_f32 v%d, v%d, v%d" % (P+i, P+i, P+8+i))
            a("v_add_f32 v%d, v%d, v%d" % (P+16+i, P+16+i, P+24+i))
        for i in range(8):
            a("v_add_f32 v%d, v%d, v%d" % (P+i, P+i, P+16+i))
        for i in range(0, 8, 2): rnd2(a, P+i, P+i+1, 40+i)
        for i in range(8):
            a("v_mul_f32 v%d, v%d, v%d" % (P+i, P+i, 16+i))
        for i in range(0, 8, 2): rnd2(a, P+i, P+i+1, 40+i)
        for i in range(8):
            a("v_add_f32 v%d, v%d, v%d" % (P+i, P+i, 24+8*it+i))
        for j in range(4):
            a("v_cvt_pk_bf16_f32 v%d, v%d, v%d" % (48+4*it+j, P+2*j, P+2*j+1))
    a("s_mov_b32 s41, %d" % (32*896))
    a("buffer_store_dwordx4 v[48:51], v6, s[8:11], 0 offen")
    a("buffer_store_dwordx4 v[52:55], v6, s[8:11], s41 offen")
    a.label("K4_END")
    a("s_endpgm")
    return name, 176

def main():
    ref = open("adaLN_cond__ssm_conv_h3__geglu_ffn__prompt.s.ref").read().splitlines()
    head = [l for l in ref if l.startswith(";") and "@launch" not in l and "Override launch" not in l and "grid=ceil" not in l]
    a = Asm()
    ks = []
    launches = []
    n, v = gen_k0(a); ks.append((n, v)); launches.append((n, N_KV+N_MOD+N_REP, 256, 8192))
    n, v = gen_k1(a); ks.append((n, v)); launches.append((n, 448, 256, K1_LDS))
    n, v = gen_k2(a); ks.append((n, v)); launches.append((n, 256, 512, K2_LDS))
    n, v = gen_k3(a); ks.append((n, v)); launches.append((n, 224, 256, K3_LDS))
    n, v = gen_k4(a); ks.append((n, v)); launches.append((n, 224, 256, K4_LDS))
    out = "\n".join(head) + "\n"
    for n, g, b, l in launches:
        out += "; @launch kernel=%s grid=(%d,1,1) block=(%d,1,1) lds=%d\n" % (n, g, b, l)
    out += '.amdgcn_target "amdgcn-amd-amdhsa--gfx950"\n.text\n'
    out += a.text()
    out += '.section .rodata,"a"\n'
    for n, v in ks:
        out += ".p2align 6\n" + kd(n, v)
    path = sys.argv[1] if len(sys.argv) > 1 else "adaLN_cond__ssm_conv_h3__geglu_ffn__prompt.s"
    open(path, "w").write(out)
main()
```

```python
import sys
sys.path.insert(0, "dev")
from layout import MOD, KVT, YB, X1, H2, WGU, WD, G

import os
STAMP = int(os.environ.get("STAMP", "0"))
STAMP_OFF = 0x1710000
WS_BYTES = 0x1800000
KA = dict(q=0, k=8, v=16, shift=24, ssm_k=32, ssm_D=40, bx=48, wg=56, wu=64, wd=72, c=80, wmod=88, out=96, dbg=104, ws=112)
NB_SD = 2048*448*2

class Asm:
    def __init__(self):
        self.lines = []
    def __call__(self, s):
        self.lines.append("    " + s)
    def label(self, l):
        self.lines.append(l + ":")
    def c(self, s):
        self.lines.append("    ; " + s)
    def nop(self, n):
        while n > 0:
            k = min(n, 16)
            self("s_nop %d" % (k-1))
            n -= k
    def ldptr(self, sd, name):
        self("s_load_dwordx2 s[%d:%d], s[0:1], %d" % (sd, sd+1, KA[name]))
    def srd(self, sd, sp, nbytes):
        self("s_mov_b32 s%d, s%d" % (sd, sp))
        self("s_and_b32 s%d, s%d, 0xffff" % (sd+1, sp+1))
        self("s_mov_b32 s%d, 0x%x" % (sd+2, nbytes))
        self("s_mov_b32 s%d, 0x00020000" % (sd+3))
    def stamp(self, i):
        if STAMP:
            self("s_memrealtime s[%d:%d]" % (80+2*i, 81+2*i))
    def stamp_flush(self, kidx, n):
        if STAMP == 2:
            self("s_load_dwordx2 s[76:77], s[0:1], 104")
            self("s_waitcnt vmcnt(0) lgkmcnt(0)")
            self("s_memrealtime s[%d:%d]" % (80+2*n, 81+2*n))
            self("s_sub_u32 s76, s76, %d" % (512*kidx))
            self("s_subb_u32 s77, s77, 0")
            self.srd(72, 76, 256)
            self("s_waitcnt lgkmcnt(0)")
            self("s_mov_b64 exec, 1")
            self("v_cmp_eq_u32 vcc, 0, v0")
            self("s_and_b64 exec, exec, vcc")
            self("v_mov_b32 v1, 0")
            self("s_not_b32 s80, s80")
            self("v_mov_b32 v2, s80")
            self("buffer_atomic_umax v2, v1, s[72:75], 0 offen offset:%d" % (8*kidx))
            self("v_mov_b32 v3, s%d" % (80+2*n))
            self("buffer_atomic_umax v3, v1, s[72:75], 0 offen offset:%d" % (8*kidx+4))
        elif STAMP:
            self("s_waitcnt vmcnt(0) lgkmcnt(0)")
            self("s_memrealtime s[%d:%d]" % (80+2*n, 81+2*n))
            self("s_waitcnt lgkmcnt(0)")
            self("s_mov_b64 exec, 1")
            self("v_cmp_eq_u32 vcc, 0, v0")
            self("s_and_b64 exec, exec, vcc")
            self("s_lshl_b32 s78, s2, 6")
            self("s_add_u32 s78, s78, 0x%x" % (STAMP_OFF + kidx*0x20000))
            self("v_mov_b32 v1, 0")
            for i in range(n+1):
                self("v_mov_b32 v2, s%d" % (80+2*i))
                self("buffer_store_dword v2, v1, s[20:23], s78 offen offset:%d" % (4*i))
                self("s_nop 1")
    def text(self):
        return "\n".join(self.lines) + "\n"

def vr(a, n):
    return "v[%d:%d]" % (a, a+n-1)
def sr(a, n):
    return "s[%d:%d]" % (a, a+n-1)

def kernel_head(a, name):
    a.lines.append(".globl %s" % name)
    a.lines.append(".p2align 8")
    a.lines.append(".type %s,@function" % name)
    a.label(name)

def kd(name, vgpr, sgpr=102):
    acc = (vgpr + 3)//4*4
    return f""".amdhsa_kernel {name}
  .amdhsa_next_free_vgpr {vgpr}
  .amdhsa_next_free_sgpr {sgpr}
  .amdhsa_accum_offset {acc}
  .amdhsa_group_segment_fixed_size 0
  .amdhsa_kernarg_size 120
  .amdhsa_user_sgpr_count 2
  .amdhsa_user_sgpr_kernarg_segment_ptr 1
  .amdhsa_system_sgpr_workgroup_id_x 1
.end_amdhsa_kernel
"""

def unpack(a, dlo, dhi, src):
    a("v_lshlrev_b32 v%d, 16, v%d" % (dlo, src))
    a("v_and_b32 v%d, 0xffff0000, v%d" % (dhi, src))

def rnd2(a, lo, hi, tmp):
    a("v_cvt_pk_bf16_f32 v%d, v%d, v%d" % (tmp, lo, hi))
    unpack(a, lo, hi, tmp)

N_KV, N_MOD, N_REP = 224, 42, 147
def gen_k0(a):
    name = "prep_kernel"
    kernel_head(a, name)
    a.stamp(0)
    a.ldptr(4, 'ws')
    a("s_cmp_lt_u32 s2, %d" % N_KV)
    a("s_cbranch_scc1 K0_KV")
    a("s_cmp_lt_u32 s2, %d" % (N_KV+N_MOD))
    a("s_cbranch_scc1 K0_MOD")
    a("s_cmp_lt_u32 s2, %d" % (N_KV+N_MOD+N_REP))
    a("s_cbranch_scc1 K0_REP")
    a("s_endpgm")
    a.label("K0_KV")
    a.ldptr(6, 'k'); a.ldptr(24, 'v'); a.ldptr(26, 'shift')
    a("s_mov_b32 s30, 0x24924925")
    a("s_mul_hi_u32 s31, s2, s30")
    a("s_mul_i32 s32, s31, 7")
    a("s_sub_u32 s32, s2, s32")
    a("s_lshl_b32 s33, s31, 6")
    a("v_lshrrev_b32 v1, 5, v0")
    a("v_lshl_add_u32 v1, v1, 3, s33")
    a("v_and_b32 v5, 31, v0")
    a("s_lshl_b32 s34, s32, 7")
    a("v_lshl_add_u32 v6, v5, 2, s34")
    a("s_movk_i32 s35, 896")
    a("v_mad_u32_u24 v2, v1, s35, v6")
    a("v_add_u32 v3, %d, v2" % (5*896))
    a("v_subrev_u32 v4, %d, v2" % (3*896))
    a("v_lshlrev_b32 v7, 2, v6")
    a("s_waitcnt lgkmcnt(0)")
    a.srd(8, 6, NB_SD); a.srd(12, 24, NB_SD); a.srd(16, 26, 448*8); a.srd(20, 4, WS_BYTES)
    a("buffer_load_dwordx4 v[32:35], v7, s[16:19], 0 offen")
    for i in range(3):
        a("buffer_load_dword v%d, v4, s[8:11], 0 offen offset:%d" % (10+i, i*896))
    for i in range(5):
        a("buffer_load_dword v%d, v2, s[8:11], 0 offen offset:%d" % (13+i, i*896))
    for i in range(3):
        a("buffer_load_dword v%d, v3, s[8:11], 0 offen offset:%d" % (18+i, i*896))
    for i in range(5):
        a("buffer_load_dword v%d, v2, s[12:15], 0 offen offset:%d" % (22+i, i*896))
    for i in range(3):
        a("buffer_load_dword v%d, v3, s[12:15], 0 offen offset:%d" % (27+i, i*896))
    a("v_lshrrev_b32 v8, 5, v1")
    a("v_lshlrev_b32 v8, 6, v8")
    a("v_bfe_u32 v9, v1, 3, 2")
    a("v_sub_u32 v9, 3, v9")
    a("v_lshl_add_u32 v8, v9, 4, v8")
    a("v_lshl_add_u32 v8, v6, 11, v8")
    a("v_add_u32 v8, 0x%x, v8" % KVT)
    a("s_waitcnt vmcnt(19)")
    a("v_lshlrev_b32 v78, 16, v32"); a("v_lshlrev_b32 v79, 16, v34")
    a("v_and_b32 v80, 0xffff0000, v32"); a("v_and_b32 v81, 0xffff0000, v34")
    a("v_lshlrev_b32 v82, 16, v33"); a("v_lshlrev_b32 v83, 16, v35")
    a("v_and_b32 v84, 0xffff0000, v33"); a("v_and_b32 v85, 0xffff0000, v35")
    a("s_waitcnt vmcnt(8)")
    for i in range(11):
        unpack(a, 40+2*i, 41+2*i, 10+i)
    a("s_waitcnt vmcnt(0)")
    a.stamp(1)
    for i in range(8):
        unpack(a, 62+2*i, 63+2*i, 22+i)
    def wf(j): return vr(78+2*j, 2)
    def kf(i): return vr(40+2*i, 2)
    for ob in range(0, 8, 4):
        accs = [116+6*t for t in range(4)]
        for t in range(4):
            o = ob+t; A = accs[t]
            a("v_pk_mul_f32 %s, %s, %s" % (vr(A, 2), kf(o), wf(3)))
        for t in range(4):
            A = accs[t]; rnd2(a, A, A+1, A+4)
        for j in range(1, 4):
            for t in range(4):
                o = ob+t; A = accs[t]
                a("v_pk_mul_f32 %s, %s, %s" % (vr(A+2, 2), kf(o+j), wf(3-j)))
            for t in range(4):
                A = accs[t]; rnd2(a, A+2, A+3, A+4)
            for t in range(4):
                A = accs[t]
                a("v_pk_add_f32 %s, %s, %s" % (vr(A, 2), vr(A, 2), vr(A+2, 2)))
            for t in range(4):
                A = accs[t]; rnd2(a, A, A+1, A+4)
        for t in range(4):
            o = ob+t; A = accs[t]
            a("v_pk_mul_f32 %s, %s, %s" % (vr(92+2*o, 2), vr(A, 2), vr(62+2*o, 2)))
    for c in range(2):
        for j in range(4):
            a("v_cvt_pk_bf16_f32 v%d, v%d, v%d" % (108+4*c+j, 92+2*(7-2*j)+c, 92+2*(6-2*j)+c))
    a("buffer_store_dwordx4 v[108:111], v8, s[20:23], 0 offen")
    a("v_add_u32 v9, 4096, v8")
    a("buffer_store_dwordx4 v[112:115], v9, s[20:23], 0 offen")
    a.stamp(2)
    a.stamp_flush(0, 3)
    a("s_endpgm")
    a.label("K0_MOD")
    a.ldptr(6, 'c'); a.ldptr(24, 'wmod')
    a("s_sub_u32 s30, s2, %d" % N_KV)
    a("s_lshl_b32 s31, s30, 7")
    a("v_and_b32 v1, 7, v0")
    a("v_lshrrev_b32 v2, 3, v0")
    a("s_mov_b32 s32, %d" % (14*5376))
    a("v_mul_lo_u32 v3, v2, s32")
    a("v_lshl_add_u32 v3, v1, 4, v3")
    a("v_add_u32 v3, s31, v3")
    a("v_mul_u32_u24 v4, 28, v2")
    a("s_waitcnt lgkmcnt(0)")
    a.srd(8, 6, 896); a.srd(12, 24, 448*5376); a.srd(20, 4, WS_BYTES)
    for j in range(7):
        a("buffer_load_dword v%d, v4, s[8:11], 0 offen offset:%d" % (10+j, 4*j))
    a("s_mov_b32 s33, 0")
    for i in range(14):
        a("buffer_load_dwordx4 %s, v3, s[12:15], s33 offen" % vr(20+4*i, 4))
        a("s_add_u32 s33, s33, 5376")
    a("s_waitcnt vmcnt(14)")
    for j in range(7):
        unpack(a, 80+2*j, 81+2*j, 10+j)
    a("s_mov_b32 s34, 0xbfb8aa3b")
    for i in range(14):
        a("v_mul_f32 v%d, s34, v%d" % (96+i, 80+i))
    for i in range(14):
        a("v_exp_f32 v%d, v%d" % (96+i, 96+i))
    a.nop(1)
    for i in range(14):
        a("v_add_f32 v%d, 1.0, v%d" % (96+i, 96+i))
    for i in range(14):
        a("v_rcp_f32 v%d, v%d" % (96+i, 96+i))
    a.nop(1)
    for i in range(14):
        a("v_mul_f32 v%d, v%d, v%d" % (80+i, 80+i, 96+i))
    for j in range(7):
        rnd2(a, 80+2*j, 81+2*j, 96+j)
    for e in range(8):
        a("v_mov_b32 v%d, 0" % (112+e))
    for i in range(14):
        a("s_waitcnt vmcnt(%d)" % (13-i))
        for c in range(4):
            unpack(a, 120+2*c, 121+2*c, 20+4*i+c)
        for e in range(8):
            a("v_fmac_f32 v%d, v%d, v%d" % (112+e, 80+i, 120+e))
    a.stamp(1)
    a("v_lshlrev_b32 v5, 5, v0")
    a("ds_write_b128 v5, v[112:115]")
    a("ds_write_b128 v5, v[116:119] offset:16")
    a("s_waitcnt lgkmcnt(0)")
    a("s_barrier")
    a("v_cmp_gt_u32 vcc, 64, v0")
    a("s_and_saveexec_b64 s[36:37], vcc")
    a("s_cbranch_execz K0_MOD_END")
    a("v_lshlrev_b32 v5, 2, v0")
    for i in range(32):
        a("ds_read_b32 v%d, v5 offset:%d" % (20+i, 256*i))
    a("s_waitcnt lgkmcnt(0)")
    for st in (16, 8, 4, 2, 1):
        for i in range(st):
            a("v_add_f32 v%d, v%d, v%d" % (20+i, 20+i, 20+i+st))
    a("v_cvt_pk_bf16_f32 v21, v20, v20")
    a("v_lshlrev_b32 v22, 16, v21")
    a("v_add_f32 v22, 1.0, v22")
    a("v_cvt_pk_bf16_f32 v22, v22, v22")
    a("s_mov_b32 s32, 0x24924925")
    a("s_mul_hi_u32 s33, s30, s32")
    a("s_cmp_eq_u32 s33, 1")
    a("s_cselect_b32 s34, 1, 0")
    a("s_cmp_eq_u32 s33, 4")
    a("s_cselect_b32 s34, 1, s34")
    a("s_cmp_eq_u32 s34, 1")
    a("s_cbranch_scc0 K0_MOD_ST")
    a("v_mov_b32 v21, v22")
    a.label("K0_MOD_ST")
    a("v_lshl_add_u32 v6, v0, 1, s31")
    if MOD: a("v_add_u32 v6, 0x%x, v6" % MOD)
    a("buffer_store_short v21, v6, s[20:23], 0 offen")
    a.stamp(2)
    a.stamp_flush(0, 3)
    a.label("K0_MOD_END")
    a("s_endpgm")
    a.label("K0_REP")
    a.ldptr(6, 'wg'); a.ldptr(24, 'wu'); a.ldptr(26, 'wd')
    a("s_sub_u32 s30, s2, %d" % (N_KV+N_MOD))
    a("v_lshrrev_b32 v1, 6, v0")
    a.nop(1)
    a("v_readfirstlane_b32 s31, v1")
    a("v_and_b32 v1, 63, v0")
    a("s_mov_b32 s40, 0x05040100")
    a("s_mov_b32 s41, 0x07060302")
    a("s_waitcnt lgkmcnt(0)")
    a.srd(20, 4, WS_BYTES)
    a("s_cmp_ge_u32 s30, 98")
    a("s_cbranch_scc1 K0_REP_WD")
    a("s_cmp_ge_u32 s30, 49")
    a("s_cselect_b32 s32, 1, 0")
    a("s_cselect_b32 s6, s24, s6")
    a("s_cselect_b32 s7, s25, s7")
    a("s_mul_i32 s33, s32, 49")
    a("s_sub_u32 s30, s30, s33")
    a.srd(8, 6, 448*3584)
    a("s_lshl_b32 s30, s30, 2")
    a("s_add_u32 s30, s30, s31")
    a("s_mov_b32 s33, 0x24924925")
    a("s_mul_hi_u32 s34, s30, s33")
    a("s_mul_i32 s35, s34, 7")
    a("s_sub_u32 s35, s30, s35")
    a("v_and_b32 v2, 31, v1")
    a("v_lshrrev_b32 v3, 5, v1")
    a("s_lshl_b32 s36, s35, 5")
    a("v_add_u32 v2, s36, v2")
    a("s_lshl_b32 s37, s34, 1")
    a("v_add_u32 v4, s37, v3")
    a("s_mov_b32 s38, %d" % (8*3584))
    a("v_mul_lo_u32 v5, v4, s38")
    a("v_lshl_add_u32 v5, v2, 4, v5")
    a("s_mov_b32 s39, 0")
    for e in range(8):
        a("buffer_load_dwordx4 %s, v5, s[8:11], s39 offen" % vr(16+4*e, 4))
        a("s_add_u32 s39, s39, 3584")
    a("v_lshrrev_b32 v6, 1, v2")
    a("v_mul_u32_u24 v6, 28, v6")
    a("v_add_u32 v6, s34, v6")
    a("v_lshlrev_b32 v6, 10, v6")
    a("v_and_b32 v7, 1, v2")
    a("v_lshlrev_b32 v7, 8, v7")
    a("v_lshl_add_u32 v7, v3, 9, v7")
    a("v_add_u32 v6, v6, v7")
    a("s_lshl_b32 s42, s32, 7")
    a("s_add_u32 s42, s42, 0x%x" % WGU)
    a("v_add_u32 v6, s42, v6")
    a("s_branch K0_REP_TR")
    a.label("K0_REP_WD")
    a("s_sub_u32 s30, s30, 98")
    a.srd(8, 26, 1792*896)
    a("s_lshl_b32 s30, s30, 2")
    a("s_add_u32 s30, s30, s31")
    a("s_mov_b32 s33, 0x24924925")
    a("s_mul_hi_u32 s34, s30, s33")
    a("s_mul_i32 s35, s34, 7")
    a("s_sub_u32 s35, s30, s35")
    a("v_and_b32 v2, 7, v1")
    a("v_lshrrev_b32 v3, 3, v1")
    a("s_lshl_b32 s36, s35, 3")
    a("v_add_u32 v2, s36, v2")
    a("s_lshl_b32 s37, s34, 3")
    a("v_add_u32 v4, s37, v3")
    a("v_lshrrev_b32 v8, 1, v4")
    a("v_and_b32 v9, 1, v4")
    a("v_lshlrev_b32 v5, 4, v8")
    a("v_lshl_add_u32 v5, v9, 2, v5")
    a("s_movk_i32 s38, 896")
    a("v_mul_lo_u32 v5, v5, s38")
    a("v_lshl_add_u32 v5, v2, 4, v5")
    a("s_movk_i32 s39, %d" % (8*896))
    for e in range(4):
        a("buffer_load_dwordx4 %s, v5, s[8:11], 0 offen offset:%d" % (vr(16+4*e, 4), e*896))
    for e in range(4):
        a("buffer_load_dwordx4 %s, v5, s[8:11], s39 offen offset:%d" % (vr(32+4*e, 4), e*896))
    a("v_lshrrev_b32 v6, 2, v2")
    a("v_mul_u32_u24 v6, 112, v6")
    a("v_add_u32 v6, v8, v6")
    a("v_lshlrev_b32 v6, 10, v6")
    a("v_and_b32 v7, 3, v2")
    a("v_lshlrev_b32 v7, 7, v7")
    a("v_lshl_add_u32 v7, v9, 9, v7")
    a("v_add_u32 v6, v6, v7")
    a("v_add_u32 v6, 0x%x, v6" % WD)
    a.label("K0_REP_TR")
    a("s_waitcnt vmcnt(0)")
    a.stamp(1)
    for i in range(8):
        for j in range(4):
            a("v_perm_b32 v%d, v%d, v%d, s%d" % (48+4*i+j, 16+4*(2*j+1)+(i >> 1), 16+4*(2*j)+(i >> 1), 40+(i & 1)))
        a("buffer_store_dwordx4 %s, v6, s[20:23], 0 offen offset:%d" % (vr(48+4*i, 4), 16*i))
    a.stamp(2)
    a.stamp_flush(0, 3)
    a("s_endpgm")
    return name, 144

CS = 4416
U_OFF = 8*CS
K1_LDS = U_OFF + 96*80
def gen_k1(a):
    name = "conv_kernel"
    kernel_head(a, name)
    a("s_cmp_ge_u32 s2, 448")
    a("s_cbranch_scc1 K1_END")
    a.stamp(0)
    a.ldptr(4, 'ws'); a.ldptr(6, 'ssm_k'); a.ldptr(24, 'ssm_D')
    a("s_and_b32 s30, s2, 7")
    a("s_mul_i32 s30, s30, 56")
    a("s_lshr_b32 s31, s2, 3")
    a("s_add_u32 s30, s30, s31")
    a("v_lshrrev_b32 v1, 6, v0")
    a.nop(1)
    a("v_readfirstlane_b32 s31, v1")
    a("s_waitcnt lgkmcnt(0)")
    a("s_lshl_b32 s32, s30, 12")
    a("s_add_u32 s6, s6, s32")
    a("s_addc_u32 s7, s7, 0")
    a.srd(8, 6, 4096); a.srd(20, 4, WS_BYTES)
    a("s_lshl_b32 s33, s30, 1")
    a("s_and_b32 s33, s33, 0xfffffffc")
    a("s_add_u32 s24, s24, s33")
    a("s_addc_u32 s25, s25, 0")
    a("s_load_dword s34, s[24:25], 0")
    a("v_lshlrev_b32 v2, 4, v0")
    a("s_add_u32 s35, s32, 0x%x" % KVT)
    a("buffer_load_dwordx4 v[4:7], v2, s[20:23], s35 offen")
    a("v_subrev_u32 v3, 64, v2")
    a("v_subrev_u32 v8, 48, v2")
    a("buffer_load_dwordx4 v[16:19], v3, s[8:11], 0 offen")
    a("buffer_load_dwordx4 v[20:23], v8, s[8:11], 0 offen")
    a("v_add_u32 v9, %d, v2" % (4096-64))
    a("buffer_load_dwordx4 v[56:59], v9, s[8:11], 0 offen")
    a("buffer_load_dwordx4 v[60:63], v9, s[8:11], 0 offen offset:16")
    for i in range(4): a("v_mov_b32 v%d, 0" % (12+i))
    a("v_add_u32 v10, %d, v2" % U_OFF)
    a("v_cmp_gt_u32 vcc, 160, v0")
    a("s_and_saveexec_b64 s[36:37], vcc")
    a("ds_write_b128 v10, v[12:15]")
    a("s_mov_b64 exec, s[36:37]")
    a("v_lshrrev_b32 v10, 2, v0")
    a("v_mul_u32_u24 v10, 80, v10")
    a("v_and_b32 v11, 3, v0")
    a("v_lshl_add_u32 v10, v11, 4, v10")
    a("s_waitcnt vmcnt(4)")
    a("ds_write_b128 v10, v[4:7] offset:%d" % (U_OFF + 32*80))
    def build(D, vaddr):
        XA, XB, DS = 24, 33, 42
        for j in range(7):
            a("v_alignbyte_b32 v%d, v%d, v%d, 2" % (XA+j, D+j+1, D+j))
        for j in range(1, 7):
            a("v_mov_b32 v%d, v%d" % (XB+j, XA+j))
        for j in range(1, 7):
            a("v_mov_b32 v%d, v%d" % (DS+j-1, D+j))
        for c in range(8):
            if c & 1:
                j0 = (c+1)//2
                src = (D+j0) if (j0 % 2 == 0) else (DS+j0-1)
            else:
                j0 = c//2
                src = (XA+j0) if (j0 % 2 == 0) else (XB+j0)
            assert src % 2 == 0
            a("ds_write_b128 v%d, %s offset:%d" % (vaddr, vr(src, 4), c*CS))
    a("s_waitcnt vmcnt(2)")
    a.stamp(1)
    build(16, 2)
    a("s_waitcnt vmcnt(0)")
    a("v_cmp_gt_u32 vcc, 3, v0")
    a("s_and_saveexec_b64 s[36:37], vcc")
    a("s_cbranch_execz K1_SKIP2")
    a("v_add_u32 v3, 4096, v2")
    build(56, 3)
    a.label("K1_SKIP2")
    a("s_mov_b64 exec, s[36:37]")
    a("v_and_b32 v8, 31, v0")
    a("v_bfe_u32 v9, v0, 5, 1")
    a("v_and_b32 v10, 7, v8")
    a("v_lshrrev_b32 v11, 3, v8")
    a("s_movk_i32 s38, %d" % CS)
    a("v_mul_lo_u32 v10, v10, s38")
    a("v_add_u32 v11, v11, v9")
    a("v_lshl_add_u32 v10, v11, 4, v10")
    a("s_lshl_b32 s39, s31, 9")
    a("v_add_u32 v10, s39, v10")
    a("s_lshl_b32 s39, s31, 3")
    a("s_sub_u32 s39, 25, s39")
    a("v_add_u32 v11, s39, v8")
    a("v_mul_u32_u24 v11, 80, v11")
    a("v_lshl_add_u32 v11, v9, 4, v11")
    a("v_add_u32 v11, %d, v11" % U_OFF)
    ACC0, ACC1, ACC2 = 64, 80, 96
    for i in range(48): a("v_mov_b32 v%d, 0" % (ACC0+i))
    a("s_waitcnt lgkmcnt(0)")
    a("s_barrier")
    a.stamp(2)
    steps = [(i, ks) for i in range(8) for ks in range(2)]
    FR = [112, 128]
    def rd(step, base):
        i, ks = step
        of = 32*(2*i - ks + 1)
        ou = (7-i)*80 + 32*(1-ks)
        a("ds_read_b128 %s, v10 offset:%d" % (vr(base, 4), of))
        a("ds_read_b128 %s, v11 offset:%d" % (vr(base+8, 4), ou))
        a("ds_read_b128 %s, v10 offset:%d" % (vr(base+4, 4), of+2048))
        a("ds_read_b128 %s, v11 offset:%d" % (vr(base+12, 4), ou+2560))
    rd(steps[0], FR[0])
    for n, st in enumerate(steps):
        b = FR[n & 1]
        if n+1 < len(steps):
            rd(steps[n+1], FR[(n+1) & 1])
            a("s_waitcnt lgkmcnt(4)")
        else:
            a("s_waitcnt lgkmcnt(0)")
        a("v_mfma_f32_32x32x16_bf16 %s, %s, %s, %s" % (vr(ACC0, 16), vr(b, 4), vr(b+8, 4), vr(ACC0, 16)))
        a("v_mfma_f32_32x32x16_bf16 %s, %s, %s, %s" % (vr(ACC1, 16), vr(b+4, 4), vr(b+8, 4), vr(ACC1, 16)))
        a("v_mfma_f32_32x32x16_bf16 %s, %s, %s, %s" % (vr(ACC2, 16), vr(b, 4), vr(b+12, 4), vr(ACC2, 16)))
    a.stamp(3)
    a("v_mul_u32_u24 v12, 144, v8")
    a("v_lshl_add_u32 v12, v9, 4, v12")
    a("s_mul_i32 s39, s31, 9216")
    a("v_add_u32 v12, s39, v12")
    a("s_barrier")
    a.nop(12)
    for r in range(16):
        a("v_add_f32 v%d, v%d, v%d" % (ACC1+r, ACC1+r, ACC2+r))
    for q in range(4):
        a("ds_write_b128 v12, %s offset:%d" % (vr(ACC0+4*q, 4), 32*q))
    for q in range(4):
        a("ds_write_b128 v12, %s offset:%d" % (vr(ACC1+4*q, 4), 4608+32*q))
    a("v_lshrrev_b32 v13, 2, v0")
    a("v_and_b32 v14, 3, v0")
    a("v_sub_u32 v14, 3, v14")
    a("v_mul_u32_u24 v15, 144, v13")
    a("v_lshl_add_u32 v15, v14, 5, v15")
    a("s_waitcnt lgkmcnt(0)")
    a("s_barrier")
    for w in range(4):
        a("ds_read_b128 %s, v15 offset:%d" % (vr(16+8*w, 4), 9216*w))
        a("ds_read_b128 %s, v15 offset:%d" % (vr(20+8*w, 4), 9216*w+16))
    a("s_and_b32 s35, s30, 1")
    a("s_lshl_b32 s35, s35, 4")
    a("s_lshr_b32 s34, s34, s35")
    a("s_lshl_b32 s34, s34, 16")
    for j in range(4):
        unpack(a, 48+7-2*j, 48+6-2*j, 4+j)
    for i in range(8):
        a("v_mul_f32 v%d, s34, v%d" % (48+i, 48+i))
    for i in range(0, 8, 2):
        rnd2(a, 48+i, 49+i, 56)
    a("v_lshl_add_u32 v13, v13, 2, v14")
    a("s_movk_i32 s38, 7168")
    a("v_mul_lo_u32 v13, v13, s38")
    a("s_lshl_b32 s39, s30, 4")
    a("s_add_u32 s39, s39, 0x%x" % YB)
    a("s_waitcnt lgkmcnt(0)")
    for i in range(8):
        a("v_add_f32 v%d, v%d, v%d" % (16+i, 16+i, 24+i))
        a("v_add_f32 v%d, v%d, v%d" % (32+i, 32+i, 40+i))
    for i in range(8):
        a("v_add_f32 v%d, v%d, v%d" % (16+i, 16+i, 32+i))
    for i in range(0, 8, 2):
        rnd2(a, 16+i, 17+i, 56)
    for i in range(8):
        a("v_add_f32 v%d, v%d, v%d" % (16+i, 16+i, 48+i))
    for j in range(4):
        a("v_cvt_pk_bf16_f32 v%d, v%d, v%d" % (60+j, 16+2*j, 17+2*j))
    a("buffer_store_dwordx4 v[60:63], v13, s[20:23], s39 offen")
    a.stamp(4)
    a.stamp_flush(1, 5)
    a.label("K1_END")
    a("s_endpgm")
    return name, 144

def wave_sum(a, v, t, s0, dst):
    a.nop(2)
    a("v_add_f32_dpp v%d, v%d, v%d quad_perm:[1,0,3,2] row_mask:0xf bank_mask:0xf" % (t, v, v))
    a.nop(2)
    a("v_add_f32_dpp v%d, v%d, v%d quad_perm:[2,3,0,1] row_mask:0xf bank_mask:0xf" % (v, t, t))
    a.nop(2)
    a("v_add_f32_dpp v%d, v%d, v%d row_half_mirror row_mask:0xf bank_mask:0xf" % (t, v, v))
    a.nop(2)
    a("v_add_f32_dpp v%d, v%d, v%d row_mirror row_mask:0xf bank_mask:0xf" % (v, t, t))
    a.nop(1)
    for i in range(4):
        a("v_readlane_b32 s%d, v%d, %d" % (s0+i, v, 16*i))
    a.nop(2)
    a("v_mov_b32 v%d, s%d" % (dst, s0))
    a("v_add_f32 v%d, s%d, v%d" % (dst, s0+1, dst))
    a("v_mov_b32 v%d, s%d" % (t, s0+2))
    a("v_add_f32 v%d, s%d, v%d" % (t, s0+3, t))
    a("v_add_f32 v%d, v%d, v%d" % (dst, dst, t))

def layernorm(a, X, N, T):
    a("v_add_f32 v%d, v%d, v%d" % (T, X, X+1))
    a("v_add_f32 v%d, v%d, v%d" % (T+1, X+2, X+3))
    a("v_add_f32 v%d, v%d, v%d" % (T+2, X+4, X+5))
    a("v_add_f32 v%d, v%d, v%d" % (T+3, X+6, X+7))
    a("v_add_f32 v%d, v%d, v%d" % (T, T, T+1))
    a("v_add_f32 v%d, v%d, v%d" % (T+2, T+2, T+3))
    a("v_add_f32 v%d, v%d, v%d" % (T, T, T+2))
    a("v_cndmask_b32 v%d, 0, v%d, s[40:41]" % (T, T))
    wave_sum(a, T, T+1, 44, T+2)
    a("v_mul_f32 v%d, s42, v%d" % (T+2, T+2))
    for i in range(8):
        a("v_sub_f32 v%d, v%d, v%d" % (N+i, X+i, T+2))
    a("v_mul_f32 v%d, v%d, v%d" % (T, N, N))
    a("v_mul_f32 v%d, v%d, v%d" % (T+1, N+1, N+1))
    for i in range(2, 8, 2):
        a("v_fmac_f32 v%d, v%d, v%d" % (T, N+i, N+i))
        a("v_fmac_f32 v%d, v%d, v%d" % (T+1, N+i+1, N+i+1))
    a("v_add_f32 v%d, v%d, v%d" % (T, T, T+1))
    a("v_cndmask_b32 v%d, 0, v%d, s[40:41]" % (T, T))
    wave_sum(a, T, T+1, 44, T+3)
    a("v_mul_f32 v%d, s42, v%d" % (T+3, T+3))
    rnd2(a, T+2, T+3, T)
    a("v_add_f32 v%d, s43, v%d" % (T+3, T+3))
    a("v_cvt_pk_bf16_f32 v%d, v%d, v%d" % (T, T+3, T+3))
    a("v_lshlrev_b32 v%d, 16, v%d" % (T+3, T))
    a("v_sqrt_f32 v%d, v%d" % (T+3, T+3))
    a.nop(1)
    a("v_cvt_pk_bf16_f32 v%d, v%d, v%d" % (T, T+3, T+3))
    a("v_lshlrev_b32 v%d, 16, v%d" % (T+3, T))
    a("v_rcp_f32 v%d, v%d" % (T+3, T+3))
    for i in range(8):
        a("v_sub_f32 v%d, v%d, v%d" % (N+i, X+i, T+2))
    for i in range(0, 8, 2):
        rnd2(a, N+i, N+i+1, T+(i//2 & 1))
    for i in range(8):
        a("v_mul_f32 v%d, v%d, v%d" % (N+i, N+i, T+3))
    for i in range(0, 8, 2):
        rnd2(a, N+i, N+i+1, T+(i//2 & 1))

K2_LDS = 448*16 + 56*16
def gen_k2(a):
    name = "ln_kernel"
    kernel_head(a, name)
    a("s_cmp_ge_u32 s2, 256")
    a("s_cbranch_scc1 K2_END")
    a.stamp(0)
    a.ldptr(4, 'ws'); a.ldptr(6, 'q')
    a("v_lshrrev_b32 v1, 6, v0")
    a("v_and_b32 v2, 63, v0")
    a("v_cmp_gt_u32 s[40:41], 56, v2")
    a("s_mov_b32 s42, 0x3b124925")
    a("s_mov_b32 s43, 0x3727c5ac")
    a("s_lshl_b32 s30, s2, 3")
    a("v_add_u32 v3, s30, v1")
    a("s_movk_i32 s31, 896")
    a("v_mul_lo_u32 v4, v3, s31")
    a("v_lshl_add_u32 v4, v2, 4, v4")
    a("v_lshlrev_b32 v5, 4, v2")
    a("v_lshlrev_b32 v6, 4, v0")
    a("s_mul_i32 s32, s2, 7168")
    a("s_add_u32 s32, s32, 0x%x" % YB)
    for i in range(8, 36): a("v_mov_b32 v%d, 0" % i)
    a("s_waitcnt lgkmcnt(0)")
    a.srd(8, 6, NB_SD); a.srd(20, 4, WS_BYTES)
    a("v_cmp_gt_u32 vcc, 448, v0")
    a("s_and_saveexec_b64 s[36:37], vcc")
    a("buffer_load_dwordx4 v[8:11], v6, s[20:23], s32 offen")
    a("s_mov_b64 exec, s[40:41]")
    a("buffer_load_dwordx4 v[12:15], v4, s[8:11], 0 offen")
    for sec in range(5):
        a("buffer_load_dwordx4 %s, v5, s[20:23], 0 offen offset:%d" % (vr(16+4*sec, 4), MOD + 896*sec))
    a("s_mov_b64 exec, s[36:37]")
    a("v_lshrrev_b32 v7, 3, v0")
    a("v_lshl_add_u32 v7, v7, 4, v6")
    a("s_and_saveexec_b64 s[36:37], vcc")
    a("s_waitcnt vmcnt(6)")
    a("ds_write_b128 v7, v[8:11]")
    a("s_mov_b64 exec, s[36:37]")
    X, N, Y, M, T = 40, 48, 56, 64, 110
    for i in range(8): a("v_mov_b32 v%d, 0" % (Y+i))
    a("v_mul_u32_u24 v7, 144, v2")
    a("v_lshl_add_u32 v7, v1, 1, v7")
    a("s_waitcnt lgkmcnt(0)")
    a("s_barrier")
    a("s_mov_b64 exec, s[40:41]")
    for i in range(8):
        a("ds_read_u16_d16_hi v%d, v7 offset:%d" % (Y+i, 16*i))
    a("s_mov_b64 exec, -1")
    a("s_waitcnt vmcnt(0)")
    a.stamp(1)
    for c in range(4):
        unpack(a, X+2*c, X+2*c+1, 12+c)
    for sec in range(5):
        for c in range(4):
            unpack(a, M+8*sec+2*c, M+8*sec+2*c+1, 16+4*sec+c)
    SA, CA, GA, SB, CB = [M+8*i for i in range(5)]
    def rows(f):
        for i in range(8): f(i)
    def rnd8(R):
        for i in range(0, 8, 2): rnd2(a, R+i, R+i+1, T+(i//2 & 1))
    layernorm(a, X, N, T)
    rows(lambda i: a("v_mul_f32 v%d, v%d, v%d" % (N+i, N+i, CA+i))); rnd8(N)
    rows(lambda i: a("v_add_f32 v%d, v%d, v%d" % (N+i, N+i, SA+i))); rnd8(N)
    a("s_waitcnt lgkmcnt(0)")
    rows(lambda i: a("v_mul_f32 v%d, v%d, v%d" % (N+i, N+i, Y+i))); rnd8(N)
    rows(lambda i: a("v_mul_f32 v%d, v%d, v%d" % (N+i, N+i, GA+i))); rnd8(N)
    rows(lambda i: a("v_add_f32 v%d, v%d, v%d" % (X+i, X+i, N+i)))
    for j in range(4):
        a("v_cvt_pk_bf16_f32 v%d, v%d, v%d" % (104+j, X+2*j, X+2*j+1))
    for j in range(4):
        unpack(a, X+2*j, X+2*j+1, 104+j)
    a("v_add_u32 v4, 0x%x, v4" % X1)
    a("s_mov_b64 exec, s[40:41]")
    a("buffer_store_dwordx4 v[104:107], v4, s[20:23], 0 offen")
    a("s_mov_b64 exec, -1")
    layernorm(a, X, N, T)
    rows(lambda i: a("v_mul_f32 v%d, v%d, v%d" % (N+i, N+i, CB+i))); rnd8(N)
    rows(lambda i: a("v_add_f32 v%d, v%d, v%d" % (N+i, N+i, SB+i)))
    for j in range(4):
        a("v_cvt_pk_bf16_f32 v%d, v%d, v%d" % (116+j, N+2*j, N+2*j+1))
    a("v_lshrrev_b32 v5, 5, v3")
    a("s_movk_i32 s31, 1792")
    a("v_mul_lo_u32 v5, v5, s31")
    a("v_lshl_add_u32 v5, v2, 5, v5")
    a("v_and_b32 v6, 31, v3")
    a("v_add_u32 v5, v5, v6")
    a("v_lshlrev_b32 v5, 4, v5")
    a("v_add_u32 v5, 0x%x, v5" % H2)
    a("s_mov_b64 exec, s[40:41]")
    a("buffer_store_dwordx4 v[116:119], v5, s[20:23], 0 offen")
    a.stamp(2)
    a.stamp_flush(2, 3)
    a.label("K2_END")
    a("s_endpgm")
    return name, 128

K3_LDS = 4*28*1024
def gen_k3(a):
    name = "gemm1_kernel"
    kernel_head(a, name)
    a("s_cmp_ge_u32 s2, 224")
    a("s_cbranch_scc1 K3_END")
    a.stamp(0)
    a.ldptr(4, 'ws')
    a("s_and_b32 s30, s2, 15")
    a("s_lshr_b32 s31, s2, 4")
    a("v_lshrrev_b32 v1, 6, v0")
    a.nop(1)
    a("v_readfirstlane_b32 s32, v1")
    a("v_lshlrev_b32 v2, 4, v0")
    a("v_and_b32 v3, 63, v0")
    a("v_lshlrev_b32 v3, 4, v3")
    a("s_waitcnt lgkmcnt(0)")
    a.srd(20, 4, WS_BYTES)
    a("s_mul_i32 s33, s30, %d" % K3_LDS)
    a("s_add_u32 s33, s33, 0x%x" % H2)
    ACC = 0;
    STG = 16
    for i in range(28):
        a("buffer_load_dwordx4 %s, v2, s[20:23], s33 offen" % vr(STG+4*i, 4))
        a("s_add_u32 s33, s33, 4096")
    a("s_lshl_b32 s34, s31, 3")
    a("s_lshl_b32 s35, s32, 1")
    a("s_add_u32 s34, s34, s35")
    a("s_mul_i32 s34, s34, %d" % (28*1024))
    a("s_add_u32 s34, s34, 0x%x" % WGU)
    a("s_add_u32 s35, s34, %d" % (28*1024))
    AD = 4
    AR = 192
    BR = 224
    ACC = 64
    def lda(ks):
        slot = ks % AD
        a("buffer_load_dwordx4 %s, v3, s[20:23], s34 offen offset:%d" % (vr(AR+8*slot, 4), (ks % 4)*1024))
        a("buffer_load_dwordx4 %s, v3, s[20:23], s35 offen offset:%d" % (vr(AR+8*slot+4, 4), (ks % 4)*1024))
        if ks % 4 == 3:
            a("s_add_u32 s34, s34, 4096")
            a("s_add_u32 s35, s35, 4096")
    for ks in range(AD): lda(ks)
    a("v_add_u32 v5, %d, v2" % (14*4096))
    for i in range(28):
        a("s_waitcnt vmcnt(%d)" % (27-i+2*AD))
        a("ds_write_b128 %s, %s offset:%d" % ("v2" if i < 14 else "v5", vr(STG+4*i, 4), 4096*(i % 14)))
    a("s_waitcnt lgkmcnt(0)")
    for i in range(128): a("v_mov_b32 v%d, 0" % (ACC+i))
    a("s_barrier")
    a.stamp(1)
    a("v_add_u32 v4, %d, v3" % (2*28*1024))
    def ldb(ks):
        b = BR + 16*(ks & 1)
        for bt in range(4):
            base = "v3" if bt < 2 else "v4"
            a("ds_read_b128 %s, %s offset:%d" % (vr(b+4*bt, 4), base, ((bt & 1)*28+ks)*1024))
    ldb(0)
    for ks in range(28):
        if ks+1 < 28:
            ldb(ks+1)
        rem = min(AD-1, 27-ks)
        a("s_waitcnt vmcnt(%d) lgkmcnt(%d)" % (2*rem, 4 if ks+1 < 28 else 0))
        b = BR + 16*(ks & 1); s = AR + 8*(ks % AD)
        for at in range(2):
            for bt in range(4):
                acc = ACC + 16*(4*at+bt)
                a("v_mfma_f32_32x32x16_bf16 %s, %s, %s, %s" % (vr(acc, 16), vr(s+4*at, 4), vr(b+4*bt, 4), vr(acc, 16)))
        if ks+AD < 28:
            lda(ks+AD)
    a.nop(12)
    a.stamp(2)
    a("s_lshl_b32 s34, s31, 3")
    a("s_lshl_b32 s35, s32, 1")
    a("s_add_u32 s34, s34, s35")
    a("s_mul_i32 s35, s30, %d" % (4*112))
    a("s_add_u32 s34, s34, s35")
    a("s_lshl_b32 s34, s34, 10")
    a("s_add_u32 s34, s34, 0x%x" % G)
    a("s_mov_b32 s40, 0xc0135761")
    a("s_mov_b32 s41, 0xbdd2d3e8")
    T = 8
    for at in range(2):
        for bt in range(4):
            acc = ACC + 16*(4*at+bt)
            gs = [acc+0, acc+1, acc+2, acc+3, acc+8, acc+9, acc+10, acc+11]
            us = [acc+4, acc+5, acc+6, acc+7, acc+12, acc+13, acc+14, acc+15]
            for i in range(0, 8, 2):
                rnd2(a, gs[i], gs[i+1], T+i); rnd2(a, us[i], us[i+1], T+i+1)
            for i in range(8):
                a("v_mul_f32 v%d, v%d, v%d" % (T+i, gs[i], gs[i]))
            for i in range(8):
                a("v_mov_b32 v%d, s40" % (T+8+i))
            for i in range(8):
                a("v_fmac_f32 v%d, s41, v%d" % (T+8+i, T+i))
            for i in range(8):
                a("v_mul_f32 v%d, v%d, v%d" % (T+i, T+8+i, gs[i]))
            for i in range(8):
                a("v_exp_f32 v%d, v%d" % (T+i, T+i))
            for i in range(8):
                a("v_add_f32 v%d, 1.0, v%d" % (T+i, T+i))
            for i in range(8):
                a("v_rcp_f32 v%d, v%d" % (T+i, T+i))
            for i in range(8):
                a("v_mul_f32 v%d, v%d, v%d" % (gs[i], gs[i], T+i))
            for i in range(0, 8, 2):
                rnd2(a, gs[i], gs[i+1], T+i)
            for i in range(8):
                a("v_mul_f32 v%d, v%d, v%d" % (gs[i], gs[i], us[i]))
            o = 24 + 4*((4*at+bt) & 3)
            for j in range(4):
                a("v_cvt_pk_bf16_f32 v%d, v%d, v%d" % (o+j, gs[2*j], gs[2*j+1]))
            a("s_add_u32 s35, s34, %d" % ((bt*112+at)*1024))
            a("buffer_store_dwordx4 %s, v3, s[20:23], s35 offen" % vr(o, 4))
    a.stamp(3)
    a.stamp_flush(3, 4)
    a.label("K3_END")
    a("s_endpgm")
    return name, 256

K4_RS = 272
K4_LDS = 4*64*K4_RS
def gen_k4(a):
    name = "gemm2_kernel"
    kernel_head(a, name)
    a("s_cmp_ge_u32 s2, 224")
    a("s_cbranch_scc1 K4_END")
    a.stamp(0)
    a.ldptr(4, 'ws'); a.ldptr(6, 'out')
    a("s_and_b32 s30, s2, 31")
    a("s_lshr_b32 s31, s2, 5")
    a("v_lshrrev_b32 v1, 6, v0")
    a.nop(1)
    a("v_readfirstlane_b32 s32, v1")
    a("v_and_b32 v3, 63, v0")
    a("v_lshlrev_b32 v3, 4, v3")
    a("s_waitcnt lgkmcnt(0)")
    a.srd(20, 4, WS_BYTES); a.srd(8, 6, NB_SD)
    a("s_mul_i32 s33, s32, %d" % (28*1024))
    a("s_mul_i32 s34, s31, %d" % (2*112*1024))
    a("s_add_u32 s34, s34, s33")
    a("s_add_u32 s34, s34, 0x%x" % WD)
    a("s_add_u32 s35, s34, %d" % (112*1024))
    a("s_mul_i32 s36, s30, %d" % (2*112*1024))
    a("s_add_u32 s36, s36, s33")
    a("s_add_u32 s36, s36, 0x%x" % G)
    a("s_add_u32 s37, s36, %d" % (112*1024))
    D = 6
    ACC = 16; RG = 80
    def ld(ks):
        b = RG + 16*(ks % D)
        for i, sreg in enumerate((34, 36, 35, 37)):
            a("buffer_load_dwordx4 %s, v3, s[20:23], s%d offen offset:%d" % (vr(b+4*i, 4), sreg, (ks % 4)*1024))
        if ks % 4 == 3:
            for sreg in (34, 35, 36, 37):
                a("s_add_u32 s%d, s%d, 4096" % (sreg, sreg))
    for ks in range(D): ld(ks)
    for i in range(64): a("v_mov_b32 v%d, 0" % (ACC+i))
    for ks in range(28):
        rem = min(D-1, 27-ks)
        a("s_waitcnt vmcnt(%d)" % (4*rem))
        b = RG + 16*(ks % D)
        A = [b, b+8]; B = [b+4, b+12]
        for i in range(2):
            for j in range(2):
                acc = ACC + 16*(2*i+j)
                a("v_mfma_f32_32x32x16_bf16 %s, %s, %s, %s" % (vr(acc, 16), vr(A[i], 4), vr(B[j], 4), vr(acc, 16)))
        if ks+D < 28:
            ld(ks+D)
    a.stamp(1)
    a("v_lshrrev_b32 v4, 3, v0")
    a("v_and_b32 v5, 7, v0")
    a("s_lshl_b32 s38, s30, 6")
    a("v_add_u32 v6, s38, v4")
    a("s_movk_i32 s39, 896")
    a("v_mul_lo_u32 v6, v6, s39")
    a("v_lshl_add_u32 v6, v5, 4, v6")
    a("s_lshl_b32 s38, s31, 7")
    a("v_add_u32 v6, s38, v6")
    a("v_lshl_add_u32 v7, v5, 4, s38")
    a("s_mov_b32 s40, 0x%x" % X1)
    a("s_mov_b32 s41, 0x%x" % (X1 + 32*896))
    a("buffer_load_dwordx4 v[80:83], v6, s[20:23], s40 offen")
    a("buffer_load_dwordx4 v[84:87], v6, s[20:23], s41 offen")
    a("s_mov_b32 s42, 0x%x" % (MOD + 5*896))
    a("buffer_load_dwordx4 v[88:91], v7, s[20:23], s42 offen")
    a("v_and_b32 v8, 31, v0")
    a("v_bfe_u32 v9, v0, 5, 1")
    a("v_mul_u32_u24 v8, %d, v8" % K4_RS)
    a("v_lshl_add_u32 v8, v9, 4, v8")
    a("s_mul_i32 s38, s32, %d" % (64*K4_RS))
    a("v_add_u32 v8, s38, v8")
    a.nop(12)
    for i in range(2):
        for j in range(2):
            acc = ACC + 16*(2*i+j)
            for q in range(4):
                a("ds_write_b128 v8, %s offset:%d" % (vr(acc+4*q, 4), j*32*K4_RS + i*128 + q*32))
    a("v_mul_u32_u24 v9, %d, v4" % K4_RS)
    a("v_lshl_add_u32 v9, v5, 5, v9")
    a("s_waitcnt lgkmcnt(0)")
    a("s_barrier")
    for it in range(2):
        for w in range(4):
            a("ds_read_b128 %s, v9 offset:%d" % (vr(96+32*it+8*w, 4), w*64*K4_RS + it*32*K4_RS))
            a("ds_read_b128 %s, v9 offset:%d" % (vr(100+32*it+8*w, 4), w*64*K4_RS + it*32*K4_RS + 16))
    a("s_waitcnt vmcnt(0)")
    for c in range(4):
        unpack(a, 16+2*c, 17+2*c, 88+c)
        unpack(a, 24+2*c, 25+2*c, 80+c)
        unpack(a, 32+2*c, 33+2*c, 84+c)
    a("s_waitcnt lgkmcnt(0)")
    for it in range(2):
        P = 96+32*it
        for i in range(8):
            a("v_add_f32 v%d, v%d, v%d" % (P+i, P+i, P+8+i))
            a("v_add_f32 v%d, v%d, v%d" % (P+16+i, P+16+i, P+24+i))
        for i in range(8):
            a("v_add_f32 v%d, v%d, v%d" % (P+i, P+i, P+16+i))
        for i in range(0, 8, 2): rnd2(a, P+i, P+i+1, 40+i)
        for i in range(8):
            a("v_mul_f32 v%d, v%d, v%d" % (P+i, P+i, 16+i))
        for i in range(0, 8, 2): rnd2(a, P+i, P+i+1, 40+i)
        for i in range(8):
            a("v_add_f32 v%d, v%d, v%d" % (P+i, P+i, 24+8*it+i))
        for j in range(4):
            a("v_cvt_pk_bf16_f32 v%d, v%d, v%d" % (48+4*it+j, P+2*j, P+2*j+1))
    a("s_mov_b32 s41, %d" % (32*896))
    a("buffer_store_dwordx4 v[48:51], v6, s[8:11], 0 offen")
    a("buffer_store_dwordx4 v[52:55], v6, s[8:11], s41 offen")
    a.stamp(2)
    a.stamp_flush(4, 3)
    a.label("K4_END")
    a("s_endpgm")
    return name, 176

def main():
    ref = open("adaLN_cond__ssm_conv_h3__geglu_ffn__prompt.s.ref").read().splitlines()
    head = [l for l in ref if l.startswith(";") and "@launch" not in l and "Override launch" not in l and "grid=ceil" not in l]
    a = Asm()
    ks = []
    launches = []
    n, v = gen_k0(a); ks.append((n, v)); launches.append((n, N_KV+N_MOD+N_REP, 256, 8192))
    n, v = gen_k1(a); ks.append((n, v)); launches.append((n, 448, 256, K1_LDS))
    n, v = gen_k2(a); ks.append((n, v)); launches.append((n, 256, 512, K2_LDS))
    n, v = gen_k3(a); ks.append((n, v)); launches.append((n, 224, 256, K3_LDS))
    n, v = gen_k4(a); ks.append((n, v)); launches.append((n, 224, 256, K4_LDS))
    out = "\n".join(head) + "\n"
    for n, g, b, l in launches:
        out += "; @launch kernel=%s grid=(%d,1,1) block=(%d,1,1) lds=%d\n" % (n, g, b, l)
    out += '.amdgcn_target "amdgcn-amd-amdhsa--gfx950"\n.text\n'
    out += a.text()
    out += '.section .rodata,"a"\n'
    for n, v in ks:
        out += ".p2align 6\n" + kd(n, v)
    path = sys.argv[1] if len(sys.argv) > 1 else "adaLN_cond__ssm_conv_h3__geglu_ffn__prompt.s"
    open(path, "w").write(out)
main()
```

```python
import sys, os
sys.path.insert(0, "dev")
from layout import MOD, KVT, YB, X1, H2, WGU, WD, G
CNT = 0x8000
STAMP = int(os.environ.get("STAMP", "0"))
STAMP_OFF = 0x1710000
WS_BYTES = 0x1800000
KA = dict(q=0, k=8, v=16, shift=24, ssm_k=32, ssm_D=40, bx=48, wg=56, wu=64, wd=72, c=80, wmod=88, out=96, dbg=104, ws=112)
NB_SD = 2048*448*2
SC = " sc1"

class Asm:
    def __init__(self):
        self.lines = []
    def __call__(self, s):
        self.lines.append("    " + s)
    def label(self, l):
        self.lines.append(l + ":")
    def c(self, s):
        self.lines.append("    ; " + s)
    def nop(self, n):
        while n > 0:
            k = min(n, 16)
            self("s_nop %d" % (k-1))
            n -= k
    def ldptr(self, sd, name):
        self("s_load_dwordx2 s[%d:%d], s[0:1], %d" % (sd, sd+1, KA[name]))
    def srd(self, sd, sp, nbytes):
        self("s_mov_b32 s%d, s%d" % (sd, sp))
        self("s_and_b32 s%d, s%d, 0xffff" % (sd+1, sp+1))
        self("s_mov_b32 s%d, 0x%x" % (sd+2, nbytes))
        self("s_mov_b32 s%d, 0x00020000" % (sd+3))
    def stamp(self, i):
        if STAMP:
            self("s_memrealtime s[%d:%d]" % (64+2*i, 65+2*i))
    def stamp_flush(self, kidx, n):
        if STAMP:
            self("s_waitcnt vmcnt(0) lgkmcnt(0)")
            self("s_memrealtime s[%d:%d]" % (64+2*n, 65+2*n))
            self("s_waitcnt lgkmcnt(0)")
            self("s_mov_b64 exec, 1")
            self("v_cmp_eq_u32 vcc, 0, v0")
            self("s_and_b64 exec, exec, vcc")
            self("s_lshl_b32 s62, s2, 6")
            self("s_add_u32 s62, s62, 0x%x" % (STAMP_OFF + kidx*0x20000))
            self("v_mov_b32 v1, 0")
            for i in range(n+1):
                self("v_mov_b32 v2, s%d" % (64+2*i))
                self("buffer_store_dword v2, v1, s[20:23], s62 offen offset:%d" % (4*i))
                self("s_nop 1")
    def text(self):
        return "\n".join(self.lines) + "\n"

def vr(a, n): return "v[%d:%d]" % (a, a+n-1)

def kernel_head(a, name):
    a.lines.append(".globl %s" % name)
    a.lines.append(".p2align 8")
    a.lines.append(".type %s,@function" % name)
    a.label(name)

def kd(name, vgpr, sgpr=102):
    acc = (vgpr + 3)//4*4
    return f""".amdhsa_kernel {name}
  .amdhsa_next_free_vgpr {vgpr}
  .amdhsa_next_free_sgpr {sgpr}
  .amdhsa_accum_offset {acc}
  .amdhsa_group_segment_fixed_size 0
  .amdhsa_kernarg_size 120
  .amdhsa_user_sgpr_count 2
  .amdhsa_user_sgpr_kernarg_segment_ptr 1
  .amdhsa_system_sgpr_workgroup_id_x 1
.end_amdhsa_kernel
"""

def unpack(a, dlo, dhi, src):
    a("v_lshlrev_b32 v%d, 16, v%d" % (dlo, src))
    a("v_and_b32 v%d, 0xffff0000, v%d" % (dhi, src))
def rnd2(a, lo, hi, tmp):
    a("v_cvt_pk_bf16_f32 v%d, v%d, v%d" % (tmp, lo, hi))
    unpack(a, lo, hi, tmp)

N_MOD, N_KV = 84, 224
K0_LDS = 8192
def gen_k0(a):
    name = "prep_kernel"
    kernel_head(a, name)
    a.stamp(0)
    a.ldptr(4, 'ws')
    a("s_cmp_lt_u32 s2, %d" % N_KV)
    a("s_cbranch_scc1 K0_KV")
    a("s_cmp_lt_u32 s2, %d" % (N_KV+N_MOD))
    a("s_cbranch_scc1 K0_MOD")
    a("s_endpgm")
    a.label("K0_KV")
    a.ldptr(6, 'k'); a.ldptr(24, 'v'); a.ldptr(26, 'shift')
    a("s_mov_b32 s29, s2")
    a("s_mov_b32 s30, 0x24924925")
    a("s_mul_hi_u32 s31, s29, s30")
    a("s_mul_i32 s32, s31, 7")
    a("s_sub_u32 s32, s29, s32")
    a("s_lshl_b32 s33, s31, 6")
    a("v_bfe_u32 v1, v0, 4, 2")
    a("v_lshrrev_b32 v5, 7, v0")
    a("v_lshl_add_u32 v1, v5, 2, v1")
    a("v_lshl_add_u32 v1, v1, 3, s33")
    a("v_and_b32 v5, 15, v0")
    a("v_bfe_u32 v6, v0, 6, 1")
    a("v_lshl_add_u32 v5, v6, 4, v5")
    a("s_lshl_b32 s34, s32, 7")
    a("v_lshl_add_u32 v6, v5, 2, s34")
    a("s_movk_i32 s35, 896")
    a("v_mad_u32_u24 v2, v1, s35, v6")
    a("v_add_u32 v3, %d, v2" % (5*896))
    a("v_subrev_u32 v4, %d, v2" % (3*896))
    a("v_lshlrev_b32 v7, 2, v6")
    a("s_waitcnt lgkmcnt(0)")
    a.srd(8, 6, NB_SD); a.srd(12, 24, NB_SD); a.srd(16, 26, 448*8); a.srd(20, 4, WS_BYTES)
    a("buffer_load_dwordx4 v[32:35], v7, s[16:19], 0 offen")
    for i in range(3):
        a("buffer_load_dword v%d, v4, s[8:11], 0 offen offset:%d" % (10+i, i*896))
    for i in range(5):
        a("buffer_load_dword v%d, v2, s[8:11], 0 offen offset:%d" % (13+i, i*896))
    for i in range(3):
        a("buffer_load_dword v%d, v3, s[8:11], 0 offen offset:%d" % (18+i, i*896))
    for i in range(5):
        a("buffer_load_dword v%d, v2, s[12:15], 0 offen offset:%d" % (22+i, i*896))
    for i in range(3):
        a("buffer_load_dword v%d, v3, s[12:15], 0 offen offset:%d" % (27+i, i*896))
    a("v_lshrrev_b32 v8, 5, v1")
    a("v_lshlrev_b32 v8, 6, v8")
    a("v_bfe_u32 v9, v1, 3, 2")
    a("v_sub_u32 v9, 3, v9")
    a("v_lshl_add_u32 v8, v9, 4, v8")
    a("v_lshl_add_u32 v8, v6, 11, v8")
    a("v_add_u32 v8, 0x%x, v8" % KVT)
    a("s_waitcnt vmcnt(19)")
    a("v_lshlrev_b32 v78, 16, v32"); a("v_lshlrev_b32 v79, 16, v34")
    a("v_and_b32 v80, 0xffff0000, v32"); a("v_and_b32 v81, 0xffff0000, v34")
    a("v_lshlrev_b32 v82, 16, v33"); a("v_lshlrev_b32 v83, 16, v35")
    a("v_and_b32 v84, 0xffff0000, v33"); a("v_and_b32 v85, 0xffff0000, v35")
    a("s_waitcnt vmcnt(8)")
    for i in range(11):
        unpack(a, 40+2*i, 41+2*i, 10+i)
    def wf(j): return vr(78+2*j, 2)
    def kf(i): return vr(40+2*i, 2)
    for ob in range(0, 8, 4):
        accs = [116+6*t for t in range(4)]
        for t in range(4):
            o = ob+t; A = accs[t]
            a("v_pk_mul_f32 %s, %s, %s" % (vr(A, 2), kf(o), wf(3)))
        for t in range(4):
            A = accs[t]; rnd2(a, A, A+1, A+4)
        for j in range(1, 4):
            for t in range(4):
                o = ob+t; A = accs[t]
                a("v_pk_mul_f32 %s, %s, %s" % (vr(A+2, 2), kf(o+j), wf(3-j)))
            for t in range(4):
                A = accs[t]; rnd2(a, A+2, A+3, A+4)
            for t in range(4):
                A = accs[t]
                a("v_pk_add_f32 %s, %s, %s" % (vr(A, 2), vr(A, 2), vr(A+2, 2)))
            for t in range(4):
                A = accs[t]; rnd2(a, A, A+1, A+4)
        if ob == 0:
            a("s_waitcnt vmcnt(0)")
            a.stamp(1)
            for i in range(8):
                unpack(a, 62+2*i, 63+2*i, 22+i)
        for t in range(4):
            o = ob+t; A = accs[t]
            a("v_pk_mul_f32 %s, %s, %s" % (vr(92+2*o, 2), vr(A, 2), vr(62+2*o, 2)))
    for c in range(2):
        for j in range(4):
            a("v_cvt_pk_bf16_f32 v%d, v%d, v%d" % (108+4*c+j, 92+2*(7-2*j)+c, 92+2*(6-2*j)+c))
    a("buffer_store_dwordx4 v[108:111], v8, s[20:23], 0 offen")
    a("v_add_u32 v9, 4096, v8")
    a("buffer_store_dwordx4 v[112:115], v9, s[20:23], 0 offen")
    a.stamp(2)
    a.stamp_flush(0, 3)
    a("s_endpgm")
    a.label("K0_MOD")
    a.ldptr(6, 'c'); a.ldptr(24, 'wmod')
    a("s_sub_u32 s30, s2, %d" % N_KV)
    a("s_lshl_b32 s31, s30, 6")
    a("v_and_b32 v1, 3, v0")
    a("v_lshrrev_b32 v2, 2, v0")
    a("s_mov_b32 s32, %d" % (7*5376))
    a("v_mul_lo_u32 v3, v2, s32")
    a("v_lshl_add_u32 v3, v1, 4, v3")
    a("v_add_u32 v3, s31, v3")
    a("v_mul_u32_u24 v4, 14, v2")
    a("s_waitcnt lgkmcnt(0)")
    a.srd(8, 6, 896); a.srd(12, 24, 448*5376); a.srd(20, 4, WS_BYTES)
    for j in range(7):
        a("buffer_load_short_d16_hi v%d, v4, s[8:11], 0 offen offset:%d" % (80+j, 2*j))
    a("s_mov_b32 s33, 0")
    for i in range(7):
        a("buffer_load_dwordx4 %s, v3, s[12:15], s33 offen" % vr(20+4*i, 4))
        a("s_add_u32 s33, s33, 5376")
    a("s_waitcnt vmcnt(7)")
    for j in range(7): a("v_and_b32 v%d, 0xffff0000, v%d" % (80+j, 80+j))
    a("s_mov_b32 s34, 0xbfb8aa3b")
    for i in range(7): a("v_mul_f32 v%d, s34, v%d" % (96+i, 80+i))
    for i in range(7): a("v_exp_f32 v%d, v%d" % (96+i, 96+i))
    a.nop(1)
    for i in range(7): a("v_add_f32 v%d, 1.0, v%d" % (96+i, 96+i))
    for i in range(7): a("v_rcp_f32 v%d, v%d" % (96+i, 96+i))
    a.nop(1)
    for i in range(7): a("v_mul_f32 v%d, v%d, v%d" % (80+i, 80+i, 96+i))
    for j in range(4): rnd2(a, 80+2*j, 81+2*j, 96+j)
    for e in range(8): a("v_mov_b32 v%d, 0" % (112+e))
    for i in range(7):
        a("s_waitcnt vmcnt(%d)" % (6-i))
        for c in range(4):
            unpack(a, 120+2*c, 121+2*c, 20+4*i+c)
        for e in range(8):
            a("v_fmac_f32 v%d, v%d, v%d" % (112+e, 80+i, 120+e))
    a.stamp(1)
    a("v_lshlrev_b32 v5, 5, v0")
    a("ds_write_b128 v5, v[112:115]")
    a("ds_write_b128 v5, v[116:119] offset:16")
    a("s_waitcnt lgkmcnt(0)")
    a("s_barrier")
    a("v_cmp_gt_u32 vcc, 64, v0")
    a("s_and_saveexec_b64 s[36:37], vcc")
    a("s_cbranch_execz K0_MOD_END")
    a("v_and_b32 v5, 31, v0")
    a("v_lshrrev_b32 v6, 5, v0")
    a("v_lshlrev_b32 v5, 2, v5")
    a("v_lshl_add_u32 v5, v6, 12, v5")
    a("v_mov_b32 v7, 0")
    a("v_lshlrev_b32 v8, 2, v0")
    a("s_lshl_b32 s35, s30, 8")
    a("s_add_u32 s35, s35, 0x%x" % CNT)
    a("buffer_store_dword v7, v8, s[20:23], s35 offen")
    for i in range(32):
        a("ds_read_b32 v%d, v5 offset:%d" % (20+i, 128*i))
    a("s_waitcnt lgkmcnt(0)")
    for st in (16, 8, 4, 2, 1):
        for i in range(st):
            a("v_add_f32 v%d, v%d, v%d" % (20+i, 20+i, 20+i+st))
    a("v_mov_b32 v21, v20")
    a.nop(2)
    a("v_permlane32_swap_b32 v20, v21")
    a.nop(2)
    a("v_add_f32 v20, v20, v21")
    a("v_cvt_pk_bf16_f32 v21, v20, v20")
    a("v_lshlrev_b32 v22, 16, v21")
    a("v_add_f32 v22, 1.0, v22")
    a("v_cvt_pk_bf16_f32 v22, v22, v22")
    a("s_lshr_b32 s33, s30, 1")
    a("s_mov_b32 s32, 0x24924925")
    a("s_mul_hi_u32 s33, s33, s32")
    a("s_cmp_eq_u32 s33, 1")
    a("s_cselect_b32 s34, 1, 0")
    a("s_cmp_eq_u32 s33, 4")
    a("s_cselect_b32 s34, 1, s34")
    a("s_cmp_eq_u32 s34, 1")
    a("s_cbranch_scc0 K0_MOD_ST")
    a("v_mov_b32 v21, v22")
    a.label("K0_MOD_ST")
    a("v_lshl_add_u32 v6, v0, 1, s31")
    a("s_mov_b64 exec, 0xffffffff")
    a("buffer_store_short v21, v6, s[20:23], 0 offen")
    a.stamp(2)
    a.stamp_flush(0, 3)
    a.label("K0_MOD_END")
    a("s_endpgm")
    return name, 144

CS = 4416
U_OFF = 8*CS
K1_LDS = U_OFF + 96*80
K3_LDS = 4*28*1024
K4_RS = 272
K4_LDS = 8*64*K4_RS
MEGA_LDS = max(2*K1_LDS, K3_LDS, K4_LDS)
BAR1 = CNT
BARR = CNT + 8*128
BAR2 = CNT + 16*128
BAR3 = CNT + 32*128
POLLW = 7
_lab = [0]
def newlab(p):
    _lab[0] += 1
    return "%s_%d" % (p, _lab[0])

def arrive(a, soff, drained=False):
    if not drained: a("s_waitcnt vmcnt(0)")
    a("s_barrier")
    l = newlab("ARR")
    a("s_cmp_lg_u32 s3, 0")
    a("s_cbranch_scc1 %s" % l)
    a("v_mov_b32 v1, 0")
    a("v_mov_b32 v2, 1")
    a("s_mov_b64 exec, 1")
    a("buffer_atomic_add v2, v1, s[20:23], s%d offen" % soff)
    a("s_mov_b64 exec, -1")
    a.label(l)
    a("s_barrier")

def wait_cnt(a, soff, nlines, target, last_target=None):
    l = newlab("WT"); p = l + "P"; d = l + "D"
    a("s_cmp_lg_u32 s3, %d" % POLLW)
    a("s_cbranch_scc1 %s" % l)
    a("v_and_b32 v1, 63, v0")
    a("v_mov_b32 v3, %d" % target)
    if last_target is not None:
        a("v_cmp_eq_u32 vcc, %d, v1" % (nlines-1))
        a("v_mov_b32 v2, %d" % last_target)
        a.nop(1)
        a("v_cndmask_b32 v3, v3, v2, vcc")
    a("v_lshlrev_b32 v1, 7, v1")
    a("s_mov_b64 exec, 0x%x" % ((1 << nlines)-1))
    a("s_mov_b32 s60, 200000")
    a("buffer_load_dword v4, v1, s[20:23], s%d offen sc1" % soff)
    a("s_sleep 2")
    a("buffer_load_dword v5, v1, s[20:23], s%d offen sc1" % soff)
    a("s_sleep 2")
    a.label(p)
    for r, rn in ((4, 6), (5, 4), (6, 5)):
        a("buffer_load_dword v%d, v1, s[20:23], s%d offen sc1" % (rn, soff))
        a("s_waitcnt vmcnt(2)")
        a("v_cmp_ne_u32 vcc, v3, v%d" % r)
        a("s_cbranch_vccz %s" % d)
        a("s_sleep 2")
    a("s_sub_u32 s60, s60, 1")
    a("s_cmp_lg_u32 s60, 0")
    a("s_cbranch_scc1 %s" % p)
    a.label(d)
    a("s_waitcnt vmcnt(0)")
    a("s_mov_b64 exec, -1")
    a.label(l)
    a("s_barrier")

RW_GU, RW_WD = 2, 5
RL = 144
REP_LDS = 2*K1_LDS
def repack_load(a):
    l = newlab("RPL")
    a("s_mov_b32 s97, 0")
    a("s_cmp_eq_u32 s3, %d" % RW_WD)
    a("s_cbranch_scc1 %sW" % l)
    a("s_cmp_lg_u32 s3, %d" % RW_GU)
    a("s_cbranch_scc1 %sE" % l)
    a("s_cmp_ge_u32 s2, 196")
    a("s_cbranch_scc1 %sE" % l)
    a.ldptr(84, 'wg'); a.ldptr(86, 'wu')
    a("s_mov_b32 s97, 1")
    a("s_mov_b32 s96, 0x24924925")
    a("s_mul_hi_u32 s98, s2, s96")
    a("s_mul_i32 s99, s98, 7")
    a("s_sub_u32 s99, s2, s99")
    a("v_and_b32 v208, 63, v0")
    a("v_and_b32 v209, 31, v208")
    a("v_lshrrev_b32 v210, 5, v208")
    a("s_lshl_b32 s96, s99, 5")
    a("v_add_u32 v211, s96, v209")
    a("s_lshl_b32 s96, s98, 1")
    a("v_add_u32 v212, s96, v210")
    a("s_mov_b32 s96, %d" % (8*3584))
    a("v_mul_lo_u32 v212, v212, s96")
    a("v_lshl_add_u32 v212, v211, 4, v212")
    a("s_waitcnt lgkmcnt(0)")
    a.srd(88, 84, 448*3584); a.srd(92, 86, 448*3584)
    a("s_mov_b32 s96, 0")
    for e in range(8):
        a("buffer_load_dwordx4 %s, v212, s[88:91], s96 offen" % vr(RL+4*e, 4))
        a("buffer_load_dwordx4 %s, v212, s[92:95], s96 offen" % vr(RL+32+4*e, 4))
        a("s_add_u32 s96, s96, 3584")
    a("s_branch %sE" % l)
    a.label(l + "W")
    a("s_sub_u32 s100, 255, s2")
    a("s_cmp_ge_u32 s100, 196")
    a("s_cbranch_scc1 %sE" % l)
    a.ldptr(84, 'wd')
    a("s_mov_b32 s97, 2")
    a("s_mov_b32 s96, 0x24924925")
    a("s_mul_hi_u32 s98, s100, s96")
    a("s_mul_i32 s99, s98, 7")
    a("s_sub_u32 s99, s100, s99")
    a("v_and_b32 v208, 63, v0")
    a("v_and_b32 v209, 7, v208")
    a("v_lshrrev_b32 v210, 3, v208")
    a("s_lshl_b32 s96, s99, 3")
    a("v_add_u32 v211, s96, v209")
    a("s_lshl_b32 s96, s98, 3")
    a("v_add_u32 v212, s96, v210")
    a("v_lshrrev_b32 v213, 1, v212")
    a("v_and_b32 v214, 1, v212")
    a("v_lshlrev_b32 v212, 4, v213")
    a("v_lshl_add_u32 v212, v214, 2, v212")
    a("s_movk_i32 s96, 896")
    a("v_mul_lo_u32 v212, v212, s96")
    a("v_lshl_add_u32 v212, v211, 4, v212")
    a("s_waitcnt lgkmcnt(0)")
    a.srd(88, 84, 1792*896)
    a("s_movk_i32 s96, %d" % (8*896))
    for e in range(4):
        a("buffer_load_dwordx4 %s, v212, s[88:91], 0 offen offset:%d" % (vr(RL+4*e, 4), e*896))
    for e in range(4):
        a("buffer_load_dwordx4 %s, v212, s[88:91], s96 offen offset:%d" % (vr(RL+16+4*e, 4), e*896))
    a.label(l + "E")

def repack_proc(a):
    l = newlab("RPP")
    a("s_cmp_eq_u32 s97, 0")
    a("s_cbranch_scc1 %sE" % l)
    a("s_mov_b32 s40, 0x05040100")
    a("s_mov_b32 s41, 0x07060302")
    a("v_lshlrev_b32 v11, 4, v208")
    a("s_cmp_eq_u32 s97, 2")
    a("s_cbranch_scc1 %sW" % l)
    a("s_mov_b32 s29, %d" % REP_LDS)
    a("v_lshrrev_b32 v7, 1, v209")
    a("v_lshlrev_b32 v7, 10, v7")
    a("v_and_b32 v6, 1, v209")
    a("v_lshl_add_u32 v7, v6, 8, v7")
    a("v_lshl_add_u32 v7, v210, 9, v7")
    a("v_add_u32 v7, s29, v7")
    a("v_and_b32 v8, 7, v209")
    a("v_lshlrev_b32 v8, 4, v8")
    a("v_and_b32 v9, 7, v208")
    a("v_bfe_u32 v10, v208, 4, 1")
    a("v_xor_b32 v9, v9, v10")
    a("v_lshlrev_b32 v9, 4, v9")
    a("v_lshrrev_b32 v10, 3, v208")
    a("v_lshl_add_u32 v9, v10, 7, v9")
    a("v_add_u32 v9, s29, v9")
    a("s_mul_i32 s36, s99, %d" % (16*28))
    a("s_add_u32 s36, s36, s98")
    a("s_lshl_b32 s36, s36, 10")
    a("s_add_u32 s36, s36, 0x%x" % WGU)
    a("s_waitcnt vmcnt(0)")
    for isup in range(2):
        src = RL + 32*isup
        for i in range(8):
            o = 80 + 4*(i & 3)
            for j in range(4):
                a("v_perm_b32 v%d, v%d, v%d, s%d" % (o+j, src+4*(2*j+1)+(i >> 1), src+4*(2*j)+(i >> 1), 40+(i & 1)))
            a("v_xor_b32 v12, %d, v8" % (16*i))
            a("v_add_u32 v12, v12, v7")
            a("ds_write_b128 v12, %s offset:%d" % (vr(o, 4), 128*isup))
    a("s_waitcnt lgkmcnt(0)")
    for q in range(4):
        a("v_xor_b32 v%d, %d, v9" % (12+q, 32*q))
    for fr in range(16):
        a("ds_read_b128 %s, v%d offset:%d" % (vr(16+4*fr, 4), 12+(fr & 3), 1024*fr))
    for fr in range(16):
        a("s_waitcnt lgkmcnt(%d)" % (15-fr))
        a("buffer_store_dwordx4 %s, v11, s[20:23], s36 offen sc1" % vr(16+4*fr, 4))
        a("s_add_u32 s36, s36, %d" % (28*1024))
    a("s_branch %sA" % l)
    a.label(l + "W")
    a("s_mov_b32 s29, %d" % (REP_LDS + 16384))
    a("v_lshrrev_b32 v7, 2, v209")
    a("v_lshlrev_b32 v7, 12, v7")
    a("v_lshl_add_u32 v7, v210, 9, v7")
    a("v_and_b32 v6, 3, v209")
    a("v_lshl_add_u32 v7, v6, 7, v7")
    a("v_add_u32 v7, s29, v7")
    a("v_lshlrev_b32 v8, 4, v209")
    a("v_and_b32 v9, 7, v208")
    a("v_bfe_u32 v10, v208, 3, 2")
    a("v_xor_b32 v9, v9, v10")
    a("v_lshlrev_b32 v9, 4, v9")
    a("v_lshrrev_b32 v10, 3, v208")
    a("v_lshl_add_u32 v9, v10, 7, v9")
    a("v_add_u32 v9, s29, v9")
    a("v_xor_b32 v13, 64, v9")
    a("s_mul_i32 s36, s99, 224")
    a("s_lshl_b32 s37, s98, 2")
    a("s_add_u32 s36, s36, s37")
    a("s_lshl_b32 s36, s36, 10")
    a("s_add_u32 s36, s36, 0x%x" % WD)
    a("s_waitcnt vmcnt(0)")
    for i in range(8):
        o = 80 + 4*(i & 3)
        for j in range(4):
            a("v_perm_b32 v%d, v%d, v%d, s%d" % (o+j, RL+4*(2*j+1)+(i >> 1), RL+4*(2*j)+(i >> 1), 40+(i & 1)))
        a("v_xor_b32 v12, %d, v8" % (16*i))
        a("v_add_u32 v12, v12, v7")
        a("ds_write_b128 v12, %s" % vr(o, 4))
    a("s_waitcnt lgkmcnt(0)")
    for fr in range(8):
        a("ds_read_b128 %s, %s offset:%d" % (vr(16+4*fr, 4), "v9" if fr < 4 else "v13", 1024*fr))
    for fr in range(8):
        a("s_waitcnt lgkmcnt(%d)" % (7-fr))
        a("s_add_u32 s37, s36, %d" % (((fr >> 2)*112 + (fr & 3))*1024))
        a("buffer_store_dwordx4 %s, v11, s[20:23], s37 offen sc1" % vr(16+4*fr, 4))
    a.label(l + "A")
    a("s_and_b32 s36, s2, 7")
    a("s_lshl_b32 s36, s36, 7")
    a("s_add_u32 s36, s36, 0x%x" % BARR)
    a("v_mov_b32 v1, 0")
    a("v_mov_b32 v2, 1")
    a("s_waitcnt vmcnt(0)")
    a("s_mov_b64 exec, 1")
    a("buffer_atomic_add v2, v1, s[20:23], s36 offen")
    a("s_mov_b64 exec, -1")
    a.label(l + "E")

def phase_conv(a):
    a.ldptr(6, 'ssm_k'); a.ldptr(24, 'ssm_D')
    a("s_and_b32 s30, s2, 7")
    a("s_mul_i32 s30, s30, 28")
    a("s_lshr_b32 s31, s2, 3")
    a("s_add_u32 s30, s30, s31")
    a("s_lshl_b32 s30, s30, 1")
    a("s_lshr_b32 s29, s3, 2")
    a("s_add_u32 s30, s30, s29")
    a("s_and_b32 s31, s3, 3")
    a("s_mul_i32 s28, s29, %d" % K1_LDS)
    a("v_and_b32 v1, 255, v0")
    a("s_waitcnt lgkmcnt(0)")
    a("s_lshl_b32 s32, s30, 12")
    a("s_add_u32 s6, s6, s32")
    a("s_addc_u32 s7, s7, 0")
    a.srd(8, 6, 4096)
    a("s_lshl_b32 s33, s30, 1")
    a("s_and_b32 s33, s33, 0xfffffffc")
    a("s_add_u32 s24, s24, s33")
    a("s_addc_u32 s25, s25, 0")
    a("s_load_dword s34, s[24:25], 0")
    a("v_lshlrev_b32 v2, 4, v1")
    a("s_add_u32 s35, s32, 0x%x" % KVT)
    a("v_subrev_u32 v3, 64, v2")
    a("v_subrev_u32 v8, 48, v2")
    a("buffer_load_dwordx4 v[16:19], v3, s[8:11], 0 offen")
    a("buffer_load_dwordx4 v[20:23], v8, s[8:11], 0 offen")
    a("v_add_u32 v9, %d, v2" % (4096-64))
    a("buffer_load_dwordx4 v[56:59], v9, s[8:11], 0 offen")
    a("buffer_load_dwordx4 v[60:63], v9, s[8:11], 0 offen offset:16")
    a("buffer_load_dwordx4 v[4:7], v2, s[20:23], s35 offen")
    a("v_add_u32 v2, s28, v2")
    for i in range(4): a("v_mov_b32 v%d, 0" % (12+i))
    a("v_cmp_gt_u32 vcc, 160, v1")
    a("s_and_saveexec_b64 s[36:37], vcc")
    a("ds_write_b128 v2, v[12:15] offset:%d" % U_OFF)
    a("s_mov_b64 exec, s[36:37]")
    def build(D, vaddr):
        XA, XB, DS = 24, 33, 42
        for j in range(7):
            a("v_alignbyte_b32 v%d, v%d, v%d, 2" % (XA+j, D+j+1, D+j))
        for j in range(1, 7):
            a("v_mov_b32 v%d, v%d" % (XB+j, XA+j))
        for j in range(1, 7):
            a("v_mov_b32 v%d, v%d" % (DS+j-1, D+j))
        for c in range(8):
            if c & 1:
                j0 = (c+1)//2
                src = (D+j0) if (j0 % 2 == 0) else (DS+j0-1)
            else:
                j0 = c//2
                src = (XA+j0) if (j0 % 2 == 0) else (XB+j0)
            a("ds_write_b128 v%d, %s offset:%d" % (vaddr, vr(src, 4), c*CS))
    a("s_waitcnt vmcnt(3)")
    build(16, 2)
    a("s_waitcnt vmcnt(1)")
    a("v_cmp_gt_u32 vcc, 3, v1")
    a("s_and_saveexec_b64 s[36:37], vcc")
    a("s_cbranch_execz K1_SKIP2")
    a("v_add_u32 v3, 4096, v2")
    build(56, 3)
    a.label("K1_SKIP2")
    a("s_mov_b64 exec, s[36:37]")
    a("v_lshrrev_b32 v10, 2, v1")
    a("v_mul_u32_u24 v10, 80, v10")
    a("v_and_b32 v11, 3, v1")
    a("v_lshl_add_u32 v10, v11, 4, v10")
    a("v_add_u32 v10, s28, v10")
    a("s_waitcnt vmcnt(0)")
    a("ds_write_b128 v10, v[4:7] offset:%d" % (U_OFF + 32*80))
    a("v_and_b32 v8, 31, v0")
    a("v_bfe_u32 v9, v0, 5, 1")
    a("v_and_b32 v10, 7, v8")
    a("v_lshrrev_b32 v11, 3, v8")
    a("s_movk_i32 s38, %d" % CS)
    a("v_mul_lo_u32 v10, v10, s38")
    a("v_add_u32 v11, v11, v9")
    a("v_lshl_add_u32 v10, v11, 4, v10")
    a("s_lshl_b32 s39, s31, 9")
    a("s_add_u32 s39, s39, s28")
    a("v_add_u32 v10, s39, v10")
    a("s_lshl_b32 s39, s31, 3")
    a("s_sub_u32 s39, 25, s39")
    a("v_add_u32 v11, s39, v8")
    a("v_mul_u32_u24 v11, 80, v11")
    a("v_lshl_add_u32 v11, v9, 4, v11")
    a("s_add_u32 s39, s28, %d" % U_OFF)
    a("v_add_u32 v11, s39, v11")
    ACC0, ACC1, ACC2 = 64, 80, 96
    a("s_waitcnt lgkmcnt(0)")
    a("s_barrier")
    a.stamp(2)
    repack_load(a)
    steps = [(i, ks) for i in range(8) for ks in range(2)]
    FR = [112, 128]
    def rd(step, base):
        i, ks = step
        of = 32*(2*i - ks + 1)
        ou = (7-i)*80 + 32*(1-ks)
        a("ds_read_b128 %s, v10 offset:%d" % (vr(base, 4), of))
        a("ds_read_b128 %s, v11 offset:%d" % (vr(base+8, 4), ou))
        a("ds_read_b128 %s, v10 offset:%d" % (vr(base+4, 4), of+2048))
        a("ds_read_b128 %s, v11 offset:%d" % (vr(base+12, 4), ou+2560))
    rd(steps[0], FR[0])
    for n, st in enumerate(steps):
        b = FR[n & 1]
        if n+1 < len(steps):
            rd(steps[n+1], FR[(n+1) & 1])
            a("s_waitcnt lgkmcnt(4)")
        else:
            a("s_waitcnt lgkmcnt(0)")
        def cc(X): return "0" if n == 0 else vr(X, 16)
        a("v_mfma_f32_32x32x16_bf16 %s, %s, %s, %s" % (vr(ACC0, 16), vr(b, 4), vr(b+8, 4), cc(ACC0)))
        a("v_mfma_f32_32x32x16_bf16 %s, %s, %s, %s" % (vr(ACC1, 16), vr(b+4, 4), vr(b+8, 4), cc(ACC1)))
        a("v_mfma_f32_32x32x16_bf16 %s, %s, %s, %s" % (vr(ACC2, 16), vr(b, 4), vr(b+12, 4), cc(ACC2)))
    a.stamp(3)
    a("v_mul_u32_u24 v12, 144, v8")
    a("v_lshl_add_u32 v12, v9, 4, v12")
    a("s_mul_i32 s39, s31, 9216")
    a("s_add_u32 s39, s39, s28")
    a("v_add_u32 v12, s39, v12")
    a("v_lshrrev_b32 v13, 2, v1")
    a("v_and_b32 v14, 3, v1")
    a("v_sub_u32 v14, 3, v14")
    a("v_mul_u32_u24 v15, 144, v13")
    a("v_lshl_add_u32 v15, v14, 5, v15")
    a("v_add_u32 v15, s28, v15")
    a("s_barrier")
    a.nop(2)
    for q in range(4):
        a("ds_write_b128 v12, %s offset:%d" % (vr(ACC0+4*q, 4), 32*q))
    for r in range(16):
        a("v_add_f32 v%d, v%d, v%d" % (ACC1+r, ACC1+r, ACC2+r))
    for q in range(4):
        a("ds_write_b128 v12, %s offset:%d" % (vr(ACC1+4*q, 4), 4608+32*q))
    a("s_and_b32 s35, s30, 1")
    a("s_lshl_b32 s35, s35, 4")
    a("s_lshr_b32 s34, s34, s35")
    a("s_lshl_b32 s34, s34, 16")
    for j in range(4):
        unpack(a, 48+7-2*j, 48+6-2*j, 4+j)
    for i in range(8):
        a("v_mul_f32 v%d, s34, v%d" % (48+i, 48+i))
    for i in range(0, 8, 2):
        rnd2(a, 48+i, 49+i, 56)
    a("s_movk_i32 s38, 28672")
    a("v_mul_lo_u32 v13, v13, s38")
    a("v_lshl_add_u32 v13, v14, 4, v13")
    a("s_lshl_b32 s39, s30, 6")
    a("s_add_u32 s39, s39, 0x%x" % YB)
    a("s_waitcnt lgkmcnt(0)")
    a("s_barrier")
    for w in range(4):
        a("ds_read_b128 %s, v15 offset:%d" % (vr(16+8*w, 4), 9216*w))
        a("ds_read_b128 %s, v15 offset:%d" % (vr(20+8*w, 4), 9216*w+16))
    a("s_waitcnt lgkmcnt(0)")
    for i in range(8):
        a("v_add_f32 v%d, v%d, v%d" % (16+i, 16+i, 24+i))
        a("v_add_f32 v%d, v%d, v%d" % (32+i, 32+i, 40+i))
    for i in range(8):
        a("v_add_f32 v%d, v%d, v%d" % (16+i, 16+i, 32+i))
    for i in range(0, 8, 2):
        rnd2(a, 16+i, 17+i, 56)
    for i in range(8):
        a("v_add_f32 v%d, v%d, v%d" % (16+i, 16+i, 48+i))
    for j in range(4):
        a("v_cvt_pk_bf16_f32 v%d, v%d, v%d" % (60+j, 16+2*j, 17+2*j))
    a("buffer_store_dwordx4 v[60:63], v13, s[20:23], s39 offen" + SC)

def wave_sum(a, v, t, s0, dst):
    a.nop(2)
    a("v_add_f32_dpp v%d, v%d, v%d quad_perm:[1,0,3,2] row_mask:0xf bank_mask:0xf" % (t, v, v))
    a.nop(2)
    a("v_add_f32_dpp v%d, v%d, v%d quad_perm:[2,3,0,1] row_mask:0xf bank_mask:0xf" % (v, t, t))
    a.nop(2)
    a("v_add_f32_dpp v%d, v%d, v%d row_half_mirror row_mask:0xf bank_mask:0xf" % (t, v, v))
    a.nop(2)
    a("v_add_f32_dpp v%d, v%d, v%d row_mirror row_mask:0xf bank_mask:0xf" % (v, t, t))
    a.nop(1)
    for i in range(4):
        a("v_readlane_b32 s%d, v%d, %d" % (s0+i, v, 16*i))
    a.nop(2)
    a("v_mov_b32 v%d, s%d" % (dst, s0))
    a("v_add_f32 v%d, s%d, v%d" % (dst, s0+1, dst))
    a("v_mov_b32 v%d, s%d" % (t, s0+2))
    a("v_add_f32 v%d, s%d, v%d" % (t, s0+3, t))
    a("v_add_f32 v%d, v%d, v%d" % (dst, dst, t))

def layernorm(a, X, N, T):
    a("v_add_f32 v%d, v%d, v%d" % (T, X, X+1))
    a("v_add_f32 v%d, v%d, v%d" % (T+1, X+2, X+3))
    a("v_add_f32 v%d, v%d, v%d" % (T+2, X+4, X+5))
    a("v_add_f32 v%d, v%d, v%d" % (T+3, X+6, X+7))
    a("v_add_f32 v%d, v%d, v%d" % (T, T, T+1))
    a("v_add_f32 v%d, v%d, v%d" % (T+2, T+2, T+3))
    a("v_add_f32 v%d, v%d, v%d" % (T, T, T+2))
    a("v_cndmask_b32 v%d, 0, v%d, s[40:41]" % (T, T))
    wave_sum(a, T, T+1, 44, T+2)
    a("v_mul_f32 v%d, s42, v%d" % (T+2, T+2))
    for i in range(8):
        a("v_sub_f32 v%d, v%d, v%d" % (N+i, X+i, T+2))
    a("v_mul_f32 v%d, v%d, v%d" % (T, N, N))
    a("v_mul_f32 v%d, v%d, v%d" % (T+1, N+1, N+1))
    for i in range(2, 8, 2):
        a("v_fmac_f32 v%d, v%d, v%d" % (T, N+i, N+i))
        a("v_fmac_f32 v%d, v%d, v%d" % (T+1, N+i+1, N+i+1))
    a("v_add_f32 v%d, v%d, v%d" % (T, T, T+1))
    a("v_cndmask_b32 v%d, 0, v%d, s[40:41]" % (T, T))
    wave_sum(a, T, T+1, 44, T+3)
    a("v_mul_f32 v%d, s42, v%d" % (T+3, T+3))
    rnd2(a, T+2, T+3, T)
    a("v_add_f32 v%d, s43, v%d" % (T+3, T+3))
    a("v_cvt_pk_bf16_f32 v%d, v%d, v%d" % (T, T+3, T+3))
    a("v_lshlrev_b32 v%d, 16, v%d" % (T+3, T))
    a("v_sqrt_f32 v%d, v%d" % (T+3, T+3))
    a.nop(1)
    a("v_cvt_pk_bf16_f32 v%d, v%d, v%d" % (T, T+3, T+3))
    a("v_lshlrev_b32 v%d, 16, v%d" % (T+3, T))
    a("v_rcp_f32 v%d, v%d" % (T+3, T+3))
    for i in range(8):
        a("v_sub_f32 v%d, v%d, v%d" % (N+i, X+i, T+2))
    for i in range(0, 8, 2):
        rnd2(a, N+i, N+i+1, T+(i//2 & 1))
    for i in range(8):
        a("v_mul_f32 v%d, v%d, v%d" % (N+i, N+i, T+3))
    for i in range(0, 8, 2):
        rnd2(a, N+i, N+i+1, T+(i//2 & 1))

WREG = 144
def g1_ids(a):
    a("s_and_b32 s52, s2, 7")
    a("s_lshr_b32 s53, s2, 3")
    a("s_lshr_b32 s50, s52, 1")
    a("s_lshl_b32 s50, s50, 2")
    a("s_and_b32 s54, s53, 3")
    a("s_add_u32 s50, s50, s54")
    a("s_and_b32 s51, s52, 1")
    a("s_mul_i32 s51, s51, 7")
    a("s_lshr_b32 s54, s53, 2")
    a("s_add_u32 s51, s51, s54")
def w1_preload(a, k0, k1):
    for ks in range(k0, k1):
        a("s_add_u32 s56, s55, %d" % ((ks//4)*4096))
        a("buffer_load_dwordx4 %s, v127, s[20:23], s56 offen offset:%d%s" % (vr(WREG+4*ks, 4), (ks % 4)*1024, SC))

LX, LN_, LY, LM, LT = 40, 48, 56, 64, 104
def phase_ln_pre(a):
    X, N, Y, M, T = LX, LN_, LY, LM, LT
    a.ldptr(6, 'q')
    a("v_lshrrev_b32 v125, 6, v0")
    a("v_and_b32 v126, 63, v0")
    a("v_lshlrev_b32 v127, 4, v126")
    a("v_cmp_gt_u32 s[40:41], 56, v126")
    a("s_mov_b32 s42, 0x3b124925")
    a("s_mov_b32 s43, 0x3727c5ac")
    a("s_lshl_b32 s30, s2, 3")
    a("v_add_u32 v123, s30, v125")
    a("s_movk_i32 s31, 896")
    a("v_mul_lo_u32 v124, v123, s31")
    a("v_add_u32 v124, v124, v127")
    for i in range(128, 144): a("v_mov_b32 v%d, 0" % i)
    for i in range(112, 120): a("v_mov_b32 v%d, 0" % i)
    a("s_waitcnt lgkmcnt(0)")
    a.srd(8, 6, NB_SD)
    a("s_mov_b64 exec, s[40:41]")
    a("buffer_load_dwordx4 v[112:115], v124, s[8:11], 0 offen")
    a("buffer_load_dwordx4 v[116:119], v127, s[20:23], 0 offen offset:%d" % (MOD + 896*4))
    for sec in range(4):
        a("buffer_load_dwordx4 %s, v127, s[20:23], 0 offen offset:%d" % (vr(128+4*sec, 4), MOD + 896*sec))
    a("s_mov_b64 exec, -1")
    a("v_lshlrev_b32 v122, 6, v0")
    a("v_lshlrev_b32 v6, 4, v0")
    a("v_lshrrev_b32 v121, 3, v0")
    a("v_lshl_add_u32 v121, v121, 4, v6")
    a("v_mul_u32_u24 v120, 144, v126")
    a("v_lshl_add_u32 v120, v125, 1, v120")
    a("s_lshr_b32 s32, s2, 2")
    a("s_mul_i32 s32, s32, 28672")
    a("s_and_b32 s33, s2, 3")
    a("s_lshl_b32 s33, s33, 4")
    a("s_add_u32 s32, s32, s33")
    a("s_add_u32 s48, s32, 0x%x" % YB)
    for i in range(8): a("v_mov_b32 v%d, 0" % (Y+i))
    a("s_waitcnt vmcnt(0)")
    for c in range(4):
        unpack(a, X+2*c, X+2*c+1, 112+c)
    for sec in range(5):
        for c in range(4):
            src = (128+4*sec+c) if sec < 4 else (116+c)
            unpack(a, M+8*sec+2*c, M+8*sec+2*c+1, src)
    SA, CA, GA, SB, CB = [M+8*i for i in range(5)]
    def rnd8(R):
        for i in range(0, 8, 2): rnd2(a, R+i, R+i+1, T+(i//2 & 1))
    layernorm(a, X, N, T)
    for i in range(8): a("v_mul_f32 v%d, v%d, v%d" % (N+i, N+i, CA+i))
    rnd8(N)
    for i in range(8): a("v_add_f32 v%d, v%d, v%d" % (N+i, N+i, SA+i))
    rnd8(N)

def phase_ln(a):
    X, N, Y, M, T = LX, LN_, LY, LM, LT
    SA, CA, GA, SB, CB = [M+8*i for i in range(5)]
    def rows(f):
        for i in range(8): f(i)
    def rnd8(R):
        for i in range(0, 8, 2): rnd2(a, R+i, R+i+1, T+(i//2 & 1))
    a("v_cmp_gt_u32 vcc, 448, v0")
    a("s_and_saveexec_b64 s[36:37], vcc")
    a("buffer_load_dwordx4 v[8:11], v122, s[20:23], s48 offen" + SC)
    a("s_waitcnt vmcnt(0)")
    a("ds_write_b128 v121, v[8:11]")
    a("s_mov_b64 exec, s[36:37]")
    a("s_waitcnt lgkmcnt(0)")
    a("s_barrier")
    a("s_mov_b64 exec, s[40:41]")
    for i in range(8):
        a("ds_read_u16_d16_hi v%d, v120 offset:%d" % (Y+i, 16*i))
    a("s_mov_b64 exec, -1")
    a("s_waitcnt lgkmcnt(0)")
    rows(lambda i: a("v_mul_f32 v%d, v%d, v%d" % (N+i, N+i, Y+i))); rnd8(N)
    rows(lambda i: a("v_mul_f32 v%d, v%d, v%d" % (N+i, N+i, GA+i))); rnd8(N)
    rows(lambda i: a("v_add_f32 v%d, v%d, v%d" % (X+i, X+i, N+i)))
    for j in range(4):
        a("v_cvt_pk_bf16_f32 v%d, v%d, v%d" % (12+j, X+2*j, X+2*j+1))
    for j in range(4):
        unpack(a, X+2*j, X+2*j+1, 12+j)
    a("v_add_u32 v4, 0x%x, v124" % X1)
    a("s_mov_b64 exec, s[40:41]")
    a("buffer_store_dwordx4 v[12:15], v4, s[20:23], 0 offen" + SC)
    a("s_mov_b64 exec, -1")
    layernorm(a, X, N, T)
    rows(lambda i: a("v_mul_f32 v%d, v%d, v%d" % (N+i, N+i, CB+i))); rnd8(N)
    rows(lambda i: a("v_add_f32 v%d, v%d, v%d" % (N+i, N+i, SB+i)))
    for j in range(4):
        a("v_cvt_pk_bf16_f32 v%d, v%d, v%d" % (16+j, N+2*j, N+2*j+1))
    a("v_lshlrev_b32 v5, 7, v126")
    a("v_xor_b32 v7, v125, v126")
    a("v_and_b32 v7, 7, v7")
    a("v_lshl_add_u32 v5, v7, 4, v5")
    a("s_mov_b64 exec, s[40:41]")
    a("ds_write_b128 v5, v[16:19] offset:8192")
    a("s_mov_b64 exec, -1")
    a("v_lshrrev_b32 v5, 3, v0")
    a("v_xor_b32 v7, v5, v0")
    a("v_and_b32 v7, 7, v7")
    a("v_lshlrev_b32 v7, 4, v7")
    a("v_lshl_add_u32 v7, v5, 7, v7")
    a("v_and_b32 v6, 7, v0")
    a("v_lshlrev_b32 v6, 4, v6")
    a("v_lshl_add_u32 v6, v5, 9, v6")
    a("s_lshr_b32 s31, s2, 2")
    a("s_mul_i32 s31, s31, 28672")
    a("s_and_b32 s33, s2, 3")
    a("s_lshl_b32 s33, s33, 7")
    a("s_add_u32 s31, s31, s33")
    a("s_add_u32 s31, s31, 0x%x" % H2)
    a("v_cmp_gt_u32 vcc, 448, v0")
    a("s_waitcnt lgkmcnt(0)")
    a("s_barrier")
    a("s_and_saveexec_b64 s[36:37], vcc")
    a("ds_read_b128 v[16:19], v7 offset:8192")
    a("s_waitcnt lgkmcnt(0)")
    a("buffer_store_dwordx4 v[16:19], v6, s[20:23], s31 offen" + SC)
    a("s_mov_b64 exec, s[36:37]")

def g1_epilogue(acc, T, o):
    L = []
    e = L.append
    gs = [acc+0, acc+1, acc+2, acc+3, acc+8, acc+9, acc+10, acc+11]
    us = [acc+4, acc+5, acc+6, acc+7, acc+12, acc+13, acc+14, acc+15]
    def r2(lo, hi, t):
        e("v_cvt_pk_bf16_f32 v%d, v%d, v%d" % (t, lo, hi))
        e("v_lshlrev_b32 v%d, 16, v%d" % (lo, t))
        e("v_and_b32 v%d, 0xffff0000, v%d" % (hi, t))
    for i in range(0, 8, 2):
        r2(gs[i], gs[i+1], T+i); r2(us[i], us[i+1], T+i+1)
    for i in range(8): e("v_mul_f32 v%d, v%d, v%d" % (T+i, gs[i], gs[i]))
    for i in range(8): e("v_fma_f32 v%d, v%d, v121, v120" % (T+i, T+i))
    for i in range(8): e("v_mul_f32 v%d, v%d, v%d" % (T+i, T+i, gs[i]))
    for i in range(8): e("v_exp_f32 v%d, v%d" % (T+i, T+i))
    for i in range(8): e("v_add_f32 v%d, 1.0, v%d" % (T+i, T+i))
    for i in range(8): e("v_rcp_f32 v%d, v%d" % (T+i, T+i))
    for i in range(8): e("v_mul_f32 v%d, v%d, v%d" % (gs[i], gs[i], T+i))
    for i in range(0, 8, 2): r2(gs[i], gs[i+1], T+i)
    for i in range(8): e("v_mul_f32 v%d, v%d, v%d" % (gs[i], gs[i], us[i]))
    for j in range(4): e("v_cvt_pk_bf16_f32 v%d, v%d, v%d" % (o+j, gs[2*j], gs[2*j+1]))
    return L

def phase_gemm1(a):
    ACC = [16, 32]; BR = 48; STG = 64; T = 128; OUT = [8, 12]
    a("v_lshlrev_b32 v2, 4, v0")
    a("s_mul_i32 s33, s50, %d" % K3_LDS)
    a("s_add_u32 s33, s33, 0x%x" % H2)
    for i in range(14):
        a("buffer_load_dwordx4 %s, v2, s[20:23], s33 offen%s" % (vr(STG+4*i, 4), SC))
        a("s_add_u32 s33, s33, 8192")
    a("v_add_u32 v3, %d, v2" % (7*8192))
    a("v_mov_b32 v120, 0xc0135761")
    a("v_mov_b32 v121, 0xbdd2d3e8")
    a("v_add_u32 v4, %d, v127" % (2*28*1024))
    a("s_lshl_b32 s34, s51, 3")
    a("s_add_u32 s34, s34, s3")
    a("s_mul_i32 s35, s50, %d" % (4*112))
    a("s_add_u32 s34, s34, s35")
    a("s_lshl_b32 s34, s34, 10")
    a("s_add_u32 s34, s34, 0x%x" % G)
    def stw(i):
        a("ds_write_b128 %s, %s offset:%d" % ("v2" if i < 7 else "v3", vr(STG+4*i, 4), 8192*(i % 7)))
    a("s_waitcnt vmcnt(10)")
    for i in range(4): stw(i)
    a("s_waitcnt lgkmcnt(0)")
    a("s_barrier")
    a.stamp(6)
    def ldb(bt, ks, slot):
        base = "v127" if bt < 2 else "v4"
        a("ds_read_b128 %s, %s offset:%d" % (vr(BR+4*slot, 4), base, ((bt & 1)*28+ks)*1024))
    PD = 3
    seq = [(bt, ks) for bt in range(4) for ks in range(28)]
    pend = []
    n_vm_after = 0
    for n in range(PD): ldb(seq[n][0], seq[n][1], n % 4)
    for n, (bt, ks) in enumerate(seq):
        extra_lgkm = 0
        if bt == 0 and ks in (8, 15, 22):
            grp = {8: (4, 7, 7), 15: (7, 11, 3), 22: (11, 14, 0)}[ks]
            a("s_waitcnt vmcnt(%d)" % grp[2])
            for i in range(grp[0], grp[1]): stw(i)
            a("s_waitcnt lgkmcnt(0)")
        if ks == 0 and bt == 1:
            pass
        nxt = n + PD
        if nxt < len(seq):
            if seq[nxt] == (1, 0):
                a("s_waitcnt lgkmcnt(0)")
                a("s_barrier")
            ldb(seq[nxt][0], seq[nxt][1], nxt % 4)
            a("s_waitcnt lgkmcnt(%d)" % PD)
        else:
            a("s_waitcnt lgkmcnt(%d)" % (len(seq)-1-n))
        acc = ACC[bt & 1]
        if ks == 0 and bt > 0 and os.environ.get("STAMPG1"):
            a.stamp(bt); a("s_waitcnt lgkmcnt(0)")
        a("v_mfma_f32_32x32x16_bf16 %s, %s, %s, %s" % (vr(acc, 16), vr(WREG+4*ks, 4), vr(BR+4*(n % 4), 4), "0" if ks == 0 else vr(acc, 16)))
        if ks == 4 and bt > 0:
            pend = g1_epilogue(ACC[(bt-1) & 1], T, OUT[(bt-1) & 1])
            pend.append("s_add_u32 s35, s34, %d" % ((bt-1)*112*1024))
            pend.append("buffer_store_dwordx4 %s, v127, s[20:23], s35 offen%s" % (vr(OUT[(bt-1) & 1], 4), SC))
        k = 5
        for _ in range(k):
            if pend: a(pend.pop(0))
    assert not pend
    a.stamp(7)

def phase_gemm1_tail(a):
    ACC = [16, 32]; T = 128; OUT = [8, 12]
    for ins in g1_epilogue(ACC[1], T, OUT[1]): a(ins)
    a("s_add_u32 s35, s34, %d" % (3*112*1024))
    a("buffer_store_dwordx4 %s, v127, s[20:23], s35 offen%s" % (vr(OUT[1], 4), SC))

def g2_ids(a):
    a("s_and_b32 s54, s2, 7")
    a("s_lshr_b32 s55, s2, 3")
    a("s_lshl_b32 s52, s54, 2")
    a("s_and_b32 s56, s55, 3")
    a("s_add_u32 s52, s52, s56")
    a("s_lshr_b32 s53, s55, 2")
def w2_preload(a):
    a("s_mul_i32 s56, s53, %d" % (2*112*1024))
    a("s_mul_i32 s57, s3, %d" % (14*1024))
    a("s_add_u32 s56, s56, s57")
    a("s_add_u32 s56, s56, 0x%x" % WD)
    for i in range(2):
        for k in range(14):
            a("s_add_u32 s58, s56, %d" % (i*112*1024 + (k//4)*4096))
            a("buffer_load_dwordx4 %s, v127, s[20:23], s58 offen offset:%d%s" % (vr(WREG+4*(14*i+k), 4), (k % 4)*1024, SC))

def phase_gemm2(a):
    ACC = 16; RG = 80; D = 8
    a("v_mov_b32 v12, v127")
    a("v_mov_b32 v13, v0")
    a("s_mul_i32 s36, s52, %d" % (2*112*1024))
    a("s_mul_i32 s57, s3, %d" % (14*1024))
    a("s_add_u32 s36, s36, s57")
    a("s_add_u32 s36, s36, 0x%x" % G)
    def ld(k):
        b = RG + 8*(k % D)
        for j in range(2):
            a("s_add_u32 s58, s36, %d" % (j*112*1024 + (k//4)*4096))
            a("buffer_load_dwordx4 %s, v12, s[20:23], s58 offen offset:%d%s" % (vr(b+4*j, 4), (k % 4)*1024, SC))
    a.ldptr(6, 'out')
    a("v_lshrrev_b32 v4, 3, v0")
    a("v_and_b32 v5, 7, v0")
    a("s_lshl_b32 s38, s52, 6")
    a("v_add_u32 v6, s38, v4")
    a("s_movk_i32 s39, 896")
    a("v_mul_lo_u32 v6, v6, s39")
    a("v_lshl_add_u32 v6, v5, 4, v6")
    a("s_lshl_b32 s38, s53, 7")
    a("v_add_u32 v6, s38, v6")
    a("v_lshl_add_u32 v7, v5, 4, s38")
    a("s_mov_b32 s40, 0x%x" % X1)
    a("buffer_load_dwordx4 v[8:11], v6, s[20:23], s40 offen" + SC)
    a("s_mov_b32 s42, 0x%x" % (MOD + 5*896))
    a("buffer_load_dwordx4 v[0:3], v7, s[20:23], s42 offen")
    for k in range(D): ld(k)
    for k in range(14):
        rem = min(D-1, 13-k)
        a("s_waitcnt vmcnt(%d)" % (2*rem))
        b = RG + 8*(k % D)
        for i in range(2):
            for j in range(2):
                acc = ACC + 16*(2*i+j)
                a("v_mfma_f32_32x32x16_bf16 %s, %s, %s, %s" % (vr(acc, 16), vr(WREG+4*(14*i+k), 4), vr(b+4*j, 4), "0" if k == 0 else vr(acc, 16)))
        if k+D < 14: ld(k+D)
    a.stamp(9)
    for c in range(4):
        a("v_mov_b32 v%d, v%d" % (80+c, 8+c))
        a("v_mov_b32 v%d, v%d" % (88+c, c))
    a("v_mov_b32 v0, v13")
    a("v_and_b32 v8, 31, v0")
    a("v_bfe_u32 v9, v0, 5, 1")
    a("v_mul_u32_u24 v8, %d, v8" % K4_RS)
    a("v_lshl_add_u32 v8, v9, 4, v8")
    a("s_mul_i32 s38, s3, %d" % (64*K4_RS))
    a("v_add_u32 v8, s38, v8")
    a("v_mul_u32_u24 v9, %d, v4" % K4_RS)
    a("v_lshl_add_u32 v9, v5, 5, v9")
    a("v_add_u32 v10, %d, v9" % (3*64*K4_RS))
    a("v_add_u32 v11, %d, v9" % (6*64*K4_RS))
    a("s_waitcnt lgkmcnt(0)")
    a.srd(8, 6, NB_SD)
    a.nop(2)
    for i in range(2):
        for j in range(2):
            acc = ACC + 16*(2*i+j)
            for q in range(4):
                a("ds_write_b128 v8, %s offset:%d" % (vr(acc+4*q, 4), j*32*K4_RS + i*128 + q*32))
    a("s_waitcnt lgkmcnt(0)")
    a("s_barrier")
    P = 144
    for w in range(8):
        base = "v%d" % (9 + w//3)
        off = (w % 3)*64*K4_RS
        a("ds_read_b128 %s, %s offset:%d" % (vr(P+8*w, 4), base, off))
        a("ds_read_b128 %s, %s offset:%d" % (vr(P+8*w+4, 4), base, off+16))
    a("s_waitcnt vmcnt(0)")
    for c in range(4):
        unpack(a, 16+2*c, 17+2*c, 88+c)
        unpack(a, 24+2*c, 25+2*c, 80+c)
    a("s_waitcnt lgkmcnt(0)")
    for st in (4, 2, 1):
        for w in range(st):
            for i in range(8):
                a("v_add_f32 v%d, v%d, v%d" % (P+8*w+i, P+8*w+i, P+8*(w+st)+i))
    for i in range(0, 8, 2): rnd2(a, P+i, P+i+1, 40+i)
    for i in range(8): a("v_mul_f32 v%d, v%d, v%d" % (P+i, P+i, 16+i))
    for i in range(0, 8, 2): rnd2(a, P+i, P+i+1, 40+i)
    for i in range(8): a("v_add_f32 v%d, v%d, v%d" % (P+i, P+i, 24+i))
    for j in range(4): a("v_cvt_pk_bf16_f32 v%d, v%d, v%d" % (48+j, P+2*j, P+2*j+1))
    a("buffer_store_dwordx4 v[48:51], v6, s[8:11], 0 offen")

def gen_mega(a):
    name = "main_kernel"
    kernel_head(a, name)
    a("s_cmp_ge_u32 s2, 256")
    a("s_cbranch_scc1 M_END")
    a.stamp(0)
    a.ldptr(4, 'ws')
    a("v_lshrrev_b32 v1, 6, v0")
    a.nop(1)
    a("v_readfirstlane_b32 s3, v1")
    a("s_waitcnt lgkmcnt(0)")
    a.srd(20, 4, WS_BYTES)
    a("s_cmp_ge_u32 s2, 224")
    a("s_cbranch_scc1 M_REPACK")
    phase_conv(a)
    a.stamp(4)
    a("s_and_b32 s59, s2, 7")
    a("s_lshl_b32 s59, s59, 7")
    a("s_add_u32 s59, s59, 0x%x" % BAR1)
    arrive(a, 59)
    a("s_branch M_A")
    a.label("M_REPACK")
    repack_load(a)
    a.label("M_A")
    repack_proc(a)
    phase_ln_pre(a)
    g1_ids(a)
    a("s_lshl_b32 s55, s51, 3")
    a("s_add_u32 s55, s55, s3")
    a("s_mul_i32 s55, s55, %d" % (28*1024))
    a("s_add_u32 s55, s55, 0x%x" % WGU)
    a("s_mov_b32 s59, 0x%x" % BAR1)
    wait_cnt(a, 59, 8, 28)
    a.stamp(5)
    phase_ln(a)
    a("s_lshr_b32 s59, s2, 4")
    a("s_lshl_b32 s59, s59, 7")
    a("s_add_u32 s59, s59, 0x%x" % BAR2)
    arrive(a, 59)
    a("s_cmp_ge_u32 s2, 224")
    a("s_cbranch_scc1 M_END")
    a.stamp(11)
    a("s_mov_b32 s59, 0x%x" % BARR)
    wait_cnt(a, 59, 8, 49)
    a.stamp(1)
    w1_preload(a, 0, 28)
    a("s_lshl_b32 s59, s50, 7")
    a("s_add_u32 s59, s59, 0x%x" % BAR2)
    wait_cnt(a, 59, 1, 16)
    a.stamp(12)
    phase_gemm1(a)
    g2_ids(a)
    a.nop(8)
    phase_gemm1_tail(a)
    a("s_lshl_b32 s59, s50, 7")
    a("s_add_u32 s59, s59, 0x%x" % BAR3)
    arrive(a, 59)
    a.stamp(8)
    w2_preload(a)
    a("s_lshr_b32 s59, s52, 1")
    a("s_lshl_b32 s59, s59, 7")
    a("s_add_u32 s59, s59, 0x%x" % BAR3)
    wait_cnt(a, 59, 1, 14)
    a.stamp(13)
    phase_gemm2(a)
    a.stamp(10)
    a.stamp_flush(1, 14)
    a.label("M_END")
    a("s_endpgm")
    return name, 256

def main():
    ref = open("adaLN_cond__ssm_conv_h3__geglu_ffn__prompt.s.ref").read().splitlines()
    head = [l for l in ref if l.startswith(";") and "@launch" not in l and "Override launch" not in l and "grid=ceil" not in l]
    a = Asm()
    ks = []; launches = []
    n, v = gen_k0(a); ks.append((n, v)); launches.append((n, N_KV+N_MOD, 256, K0_LDS))
    n, v = gen_mega(a); ks.append((n, v)); launches.append((n, 256, 512, MEGA_LDS))
    out = "\n".join(head) + "\n"
    for n, g, b, l in launches:
        out += "; @launch kernel=%s grid=(%d,1,1) block=(%d,1,1) lds=%d\n" % (n, g, b, l)
    out += '.amdgcn_target "amdgcn-amd-amdhsa--gfx950"\n.text\n'
    out += a.text()
    out += '.section .rodata,"a"\n'
    for n, v in ks:
        out += ".p2align 6\n" + kd(n, v)
    path = sys.argv[1] if len(sys.argv) > 1 else "m.s"
    open(path, "w").write(out)
main()
```
